```python
import torch

def _softmax(x, axis=-1):
    return torch.softmax(x, dim=axis)
def _gelu(x):
    return torch.nn.functional.gelu(x, approximate="tanh")
def _silu(x):
    return torch.nn.functional.silu(x)
def _sigmoid(x):
    return torch.sigmoid(x)
def _layernorm(x, axis=-1, eps=1e-5):
    m = x.mean(dim=axis, keepdim=True)
    v = x.var(dim=axis, keepdim=True, unbiased=False)
    return (x - m) / torch.sqrt(v + eps)
def _scatter_add(tgt, idx, src, axis=0):
    return tgt.clone().index_add_(axis, idx, src)
def _segment_sum(src, seg, n):
    out = torch.zeros((n,) + src.shape[1:], dtype=src.dtype)
    return out.index_add_(0, seg, src)
def _pad(x, pw):
    flat = tuple(v for pair in reversed(pw) for v in pair)
    return torch.nn.functional.pad(x, flat)

kernel_name = 'gated_mix__gqa_block_cached__swiglu_ffn__decode'

def setup_inputs():

    _w = (lambda a: (lambda t: t.to(torch.bfloat16) if t.is_floating_point() else t)(torch.as_tensor(a)))
    def _A_setup():
        B, Sq, D = 2, 1, 576
        Hq, Hkv, Sk, Dh = 32, 16, 4096, 128
        assert Hq % Hkv == 0, (Hq, Hkv)
        return {
            "x": _w((lambda *s: torch.randn(*s, dtype=torch.bfloat16) * 0.05)(B, Sq, D)),
            "k_cache": _w((lambda *s: torch.randn(*s, dtype=torch.bfloat16) * 6.4)(B, Hkv, Sk, Dh)),
            "v_cache": _w((lambda *s: torch.randn(*s, dtype=torch.bfloat16) * 0.8)(B, Hkv, Sk, Dh)),
            "wq": _w((lambda *s: torch.randn(*s, dtype=torch.bfloat16) * 6.4)(D, Hq * Dh) * (D ** -0.5)),
            "wo": _w((lambda *s: torch.randn(*s, dtype=torch.bfloat16) * 0.8)(Hq * Dh, D) * ((Hq * Dh) ** -0.5)),
        }
    _A_in = _A_setup()

    def _B_setup():
        B, S, D, F = 2, 1, 576, 4608
        return {
            "x": _w((lambda *s: torch.randn(*s, dtype=torch.bfloat16) * 0.05)(B, S, D)),
            "w_gate": _w((lambda *s: torch.randn(*s, dtype=torch.bfloat16) * 0.2)(D, F)),
            "w_up": _w((lambda *s: torch.randn(*s, dtype=torch.bfloat16) * 0.2)(D, F)),
            "w_down": _w((lambda *s: torch.randn(*s, dtype=torch.bfloat16) * 0.2)(F, D)),
        }
    _B_in = _B_setup()

    return {
        "A_x": _A_in["x"],
        "A_k_cache": _A_in["k_cache"],
        "A_v_cache": _A_in["v_cache"],
        "A_wq": _A_in["wq"],
        "A_wo": _A_in["wo"],
        "B_x": _B_in["x"],
        "B_w_gate": _B_in["w_gate"],
        "B_w_up": _B_in["w_up"],
        "B_w_down": _B_in["w_down"],
        "gate_w": _w((lambda *s: torch.randn(*s, dtype=torch.bfloat16) * 0.05)(576) * 16.0),
    }

def reference(A_x, A_k_cache, A_v_cache, A_wq, A_wo, B_x, B_w_gate, B_w_up, B_w_down, gate_w):
    def _A_ref(x, k_cache, v_cache, wq, wo):
        B, Sq, D = x.shape
        Hq, Dh = 32, 128
        Hkv = k_cache.shape[1]
        rep = Hq // Hkv
        q = (lambda x, *d: x.permute(*d))((x @ wq).reshape(B, Sq, Hq, Dh), 0, 2, 1, 3)
        k = (lambda x, n, axis: torch.repeat_interleave(x, n, dim=axis))(k_cache, rep, axis=1)
        v = (lambda x, n, axis: torch.repeat_interleave(x, n, dim=axis))(v_cache, rep, axis=1)
        scores = torch.einsum("bhqd,bhkd->bhqk", q, k) * (Dh ** -0.5)
        p = _softmax(scores, axis=-1)
        o = torch.einsum("bhqk,bhkd->bhqd", p, v)
        return (lambda x, *d: x.permute(*d))(o, 0, 2, 1, 3).reshape(B, Sq, Hq * Dh) @ wo

    def _B_ref(x, w_gate, w_up, w_down):
        g = _silu(x @ w_gate)
        u = x @ w_up
        return (g * u) @ w_down

    x = A_x
    g = _sigmoid((x * gate_w).sum(-1, keepdims=True))
    a = _A_ref(x, A_k_cache, A_v_cache, A_wq, A_wo)
    b = _B_ref(x, B_w_gate, B_w_up, B_w_down)
    return g * a + (1 - g) * b
```

```python
import sys

KN = "gated_mix__gqa_block_cached__swiglu_ffn__decode_kernel"
STAMPS = False

QP = 0x0
OP = 0x10000
ST = 0x90000
FP = 0xA0000
NPROD = 208
STAMPO = 0x8000000
F_INIT, F_Q, F_GO, F_CB0, F_CB1, F_GU, F_O, F_RED, F_GATE = 0, 4, 8, 12, 16, 20, 24, 28, 32
QL = 0x100
STL = 0x500
OB = 0x800
GUL = 0x2800
HL = 0x3800
OL = 0x3A00
REDL = 0x3B00
GATEL = 0x3D00
LDS_BYTES = 0x4000
SPIN_LIMIT = 400000

class A:
    def __init__(s): s.L = []; s.n = 0
    def __call__(s, t):
        for l in t.strip("\n").split("\n"): s.L.append("    " + l.strip())
    def lab(s, l): s.L.append(l + ":")
    def new(s, p="L"):
        s.n += 1; return f"{p}_{s.n}"
    def nop(s, k):
        while k > 0:
            c = min(k, 16); s(f"s_nop {c-1}"); k -= c

def vr(b, n=1): return f"v{b}" if n == 1 else f"v[{b}:{b+n-1}]"

def srd(a, q, lo, nbytes):
    a(f"s_mov_b32 s{q}, s{lo}\ns_mov_b32 s{q+1}, s{lo+1}\ns_mov_b32 s{q+2}, {nbytes}\ns_mov_b32 s{q+3}, 0x20000")

P_X, P_K, P_V, P_WQ, P_WO, P_BX, P_WG, P_WU = 36, 38, 40, 42, 44, 46, 48, 50
P_WD, P_GW, P_OUT, P_DBG, P_WS = 52, 54, 56, 58, 60
SX, SWS, SA, SB, SC, SDBG, SOUT = 8, 12, 16, 20, 24, 28, 32
def S(q): return f"s[{q}:{q+3}]"
S_WAVE = 3; S_U = 4; S_T = 5; S_TMP = 6; S_TMP2 = 7
S_ROLE = 62
S_RIDX = 63
S_PROD = 64
S_CNT = 65
S_B0 = 66; S_B1 = 67; S_B2 = 68; S_B3 = 69
S_EX = 70
S_EX2 = 72
S_SELLO = 74; S_SELHI = 75
S_KVH = 76; S_SPL = 77
S_C1 = 78; S_C2 = 79
S_ST0 = 80

DIAG = False
def stamp(a, idx):
    if DIAG:
        a(f"s_memrealtime s[{S_ST0+2*0}:{S_ST0+1}]")
        a("s_waitcnt lgkmcnt(0)")
        if idx == 0: a(f"s_not_b32 s{S_ST0}, s{S_ST0}")
        a(f"v_mov_b32 v14, s{S_ST0}")
        a("v_mov_b32 v15, 0")
        a(f"s_mov_b64 s[{S_ST0+4}:{S_ST0+5}], exec")
        a("s_mov_b64 exec, 1")
        a(f"buffer_atomic_umax v14, v15, {S(SDBG)}, 0 offen offset:{4*idx}")
        a(f"s_mov_b64 exec, s[{S_ST0+4}:{S_ST0+5}]")
    elif STAMPS:
        a(f"s_memrealtime s[{S_ST0+2*0}:{S_ST0+1}]")
        a("s_waitcnt lgkmcnt(0)")
        a(f"v_mov_b32 v14, s{S_ST0}")
        a(f"s_lshl_b32 s{S_ST0+2}, s2, 6")
        a(f"s_add_u32 s{S_ST0+2}, s{S_ST0+2}, {STAMPO + 4*idx}")
        a("v_mov_b32 v15, 0")
        a(f"s_mov_b64 s[{S_ST0+4}:{S_ST0+5}], exec")
        a("s_mov_b64 exec, 1")
        a(f"buffer_store_dword v14, v15, {S(SWS)}, s{S_ST0+2} offen")
        a(f"s_mov_b64 exec, s[{S_ST0+4}:{S_ST0+5}]")

def wait_lds(a, flag, target, vz, vt):
    l = a.new("W"); d = a.new("WD")
    a(f"s_mov_b32 s{S_CNT}, 0")
    a.lab(l)
    a(f"ds_read_b32 v{vt}, v{vz} offset:{flag}")
    a("s_waitcnt lgkmcnt(0)")
    a(f"v_readfirstlane_b32 s{S_TMP}, v{vt}")
    a(f"s_cmp_ge_u32 s{S_TMP}, {target}")
    a(f"s_cbranch_scc1 {d}")
    a(f"s_add_u32 s{S_CNT}, s{S_CNT}, 1")
    a(f"s_cmp_gt_u32 s{S_CNT}, {SPIN_LIMIT}")
    a(f"s_cbranch_scc1 {d}")
    a("s_sleep 1")
    a(f"s_branch {l}")
    a.lab(d)

def lds_inc(a, flag, vz, vone):
    a(f"s_mov_b64 s[{S_EX}:{S_EX+1}], exec\ns_mov_b64 exec, 1")
    a(f"ds_add_u32 v{vz}, v{vone} offset:{flag}")
    a(f"s_mov_b64 exec, s[{S_EX}:{S_EX+1}]")

def umax_chain(a, dst, regs):
    regs = list(regs)
    if len(regs) == 1:
        a(f"v_mov_b32 v{dst}, v{regs[0]}"); return
    if len(regs) == 2:
        a(f"v_max_u32 v{dst}, v{regs[0]}, v{regs[1]}"); return
    a(f"v_max3_u32 v{dst}, v{regs[0]}, v{regs[1]}, v{regs[2]}")
    i = 3
    while i < len(regs):
        if i + 1 < len(regs):
            a(f"v_max3_u32 v{dst}, v{dst}, v{regs[i]}, v{regs[i+1]}"); i += 2
        else:
            a(f"v_max_u32 v{dst}, v{dst}, v{regs[i]}"); i += 1

def poll_loop(a, emit_loads, regs, vt, sleep=2):
    l = a.new("P"); d = a.new("PD")
    a(f"s_mov_b32 s{S_CNT}, 0")
    a.lab(l)
    emit_loads()
    a("s_waitcnt vmcnt(0)")
    umax_chain(a, vt, regs)
    a(f"v_cmp_eq_u32 vcc, -1, v{vt}")
    a(f"s_cbranch_vccz {d}")
    a(f"s_add_u32 s{S_CNT}, s{S_CNT}, 1")
    a(f"s_cmp_gt_u32 s{S_CNT}, {SPIN_LIMIT}")
    a(f"s_cbranch_scc1 {d}")
    a(f"s_sleep {sleep}")
    a(f"s_branch {l}")
    a.lab(d)

def narrow_lane_offsets(a, stride, vO1, vO2, t1, t2):
    a(f"v_lshrrev_b32 v{t1}, 4, v0")
    a(f"v_bfe_u32 v{t2}, v0, 2, 2")
    a(f"v_lshlrev_b32 v{vO1}, 5, v{t2}")
    a(f"v_lshl_add_u32 v{vO1}, v{t1}, 3, v{vO1}")
    a(f"v_lshlrev_b32 v{vO2}, 3, v{t2}")
    a(f"v_lshl_add_u32 v{vO2}, v{t1}, 1, v{vO2}")
    a(f"s_mov_b32 s{S_TMP}, {stride}")
    a(f"v_mul_lo_u32 v{vO1}, v{vO1}, s{S_TMP}")
    a(f"v_mul_lo_u32 v{vO2}, v{vO2}, s{S_TMP}")
    a(f"v_and_b32 v{t1}, 3, v0")
    a(f"v_lshl_add_u32 v{vO1}, v{t1}, 4, v{vO1}")
    a(f"v_lshl_add_u32 v{vO2}, v{t1}, 4, v{vO2}")

def narrow_x_loads(a, XA, srow0, t1, t2, t3):
    a(f"v_lshrrev_b32 v{t1}, 4, v0")
    a(f"v_bfe_u32 v{t2}, v0, 2, 2")
    a(f"v_and_b32 v{t3}, 1, v0")
    a(f"v_mul_u32_u24 v{t3}, 1152, v{t3}")
    a(f"v_lshl_add_u32 v{XA+9}, v{t2}, 6, v{t3}")
    a(f"v_lshl_add_u32 v{XA+9}, v{t1}, 4, v{XA+9}")
    a(f"v_lshl_add_u32 v{t3}, v{t2}, 4, v{t3}")
    a(f"v_lshl_add_u32 v{t3}, v{t1}, 2, v{t3}")
    a(f"buffer_load_dwordx4 {vr(XA,4)}, v{XA+9}, {S(SX)}, s{srow0} offen")
    a(f"buffer_load_dwordx4 {vr(XA+4,4)}, v{XA+9}, {S(SX)}, s{srow0} offen offset:256")
    a(f"buffer_load_dword v{XA+8}, v{t3}, {S(SX)}, s{srow0} offen offset:512")

def narrow_loads(a, srdq, stride, sbase, W, vO1, vO2):
    for J in range(2):
        for j in range(8):
            r = W + (J*8 + j)*4
            a(f"s_add_u32 s{S_TMP}, s{sbase}, {(128*J + j)*stride}")
            a(f"buffer_load_dwordx4 {vr(r,4)}, v{vO1}, {S(srdq)}, s{S_TMP} offen nt")
    for j in range(2):
        r = W + 64 + j*4
        a(f"s_add_u32 s{S_TMP}, s{sbase}, {(256 + j)*stride}")
        a(f"buffer_load_dwordx4 {vr(r,4)}, v{vO2}, {S(srdq)}, s{S_TMP} offen nt")

def narrow_compute(a, W, XA, ACC, BT, vL, t1):
    for k in (9, 10, 11):
        a(f"v_mov_b32 v{XA+k}, 0")
        a(f"v_mov_b32 v{BT+k}, 0")
    a(f"v_lshrrev_b32 v{BT+1}, 4, v0")
    a(f"v_bfe_u32 v{BT}, v0, 2, 2")
    a(f"v_cmp_eq_u32 s[{S_EX2}:{S_EX2+1}], v{BT+1}, v{BT}")
    pend = None
    for u in range(4):
        acc = [ACC + (u & 1)*8, ACC + (u & 1)*8 + 4]
        for p in range(2):
            sel = S_SELHI if p else S_SELLO
            for J in range(2):
                for t in range(4):
                    lo = W + (J*8 + 2*t)*4 + u; hi = W + (J*8 + 2*t + 1)*4 + u
                    a(f"v_perm_b32 v{BT + J*4 + t}, v{hi}, v{lo}, s{sel}")
            a(f"v_perm_b32 v{BT+8}, v{W+68+u}, v{W+64+u}, s{sel}")
            a.nop(2)
            a(f"v_mfma_f32_16x16x32_bf16 {vr(acc[p],4)}, {vr(XA,4)}, {vr(BT,4)}, 0")
            a(f"v_mfma_f32_16x16x32_bf16 {vr(acc[p],4)}, {vr(XA+4,4)}, {vr(BT+4,4)}, {vr(acc[p],4)}")
            a(f"v_mfma_f32_16x16x32_bf16 {vr(acc[p],4)}, {vr(XA+8,4)}, {vr(BT+8,4)}, {vr(acc[p],4)}")
            if p == 0 and pend is not None:
                pu, pacc = pend
                a(f"s_mov_b64 exec, s[{S_EX2}:{S_EX2+1}]")
                for b in range(2):
                    a(f"ds_write2_b32 v{vL}, v{pacc[0]+b}, v{pacc[1]+b} offset0:{b*32+2*pu} offset1:{b*32+2*pu+1}")
                a("s_mov_b64 exec, -1")
        pend = (u, acc)
    a.nop(8)
    pu, pacc = pend
    a(f"s_mov_b64 exec, s[{S_EX2}:{S_EX2+1}]")
    for b in range(2):
        a(f"ds_write2_b32 v{vL}, v{pacc[0]+b}, v{pacc[1]+b} offset0:{b*32+2*pu} offset1:{b*32+2*pu+1}")
    a("s_mov_b64 exec, -1")

def narrow_lds_addr(a, vL, base, t1):
    a(f"v_bfe_u32 v{t1}, v0, 2, 2")
    a(f"v_lshlrev_b32 v{vL}, 8, v{t1}")
    a(f"v_and_b32 v{t1}, 3, v0")
    a(f"v_lshl_add_u32 v{vL}, v{t1}, 5, v{vL}")
    a(f"v_add_u32 v{vL}, {base}, v{vL}")

def wide_loads(a, srdq, sbase, W, vO):
    for j in range(8):
        a(f"s_add_u32 s{S_TMP}, s{sbase}, {j*1152}")
        a(f"buffer_load_dwordx4 {vr(W+4*j,4)}, v{vO}, {S(srdq)}, s{S_TMP} offen nt")

def wide_compute(a, units, ACC, BT, nk=8):
    for e in range(8):
        u, p = e >> 1, e & 1
        sel = S_SELHI if p else S_SELLO
        for ui, (W, Aop) in enumerate(units):
            bt = BT + ((e*len(units) + ui) & 1)*4
            for t in range(nk//2):
                lo = W + (2*t)*4 + u; hi = W + (2*t+1)*4 + u
                a(f"v_perm_b32 v{bt+t}, v{hi}, v{lo}, s{sel}")
            a.nop(2)
            c = "0" if ui == 0 else vr(ACC+4*e, 4)
            if nk == 8:
                a(f"v_mfma_f32_16x16x32_bf16 {vr(ACC+4*e,4)}, {vr(Aop,4)}, {vr(bt,4)}, {c}")
            else:
                a(f"v_mfma_f32_16x16x16_bf16 {vr(ACC+4*e,4)}, {vr(Aop,2)}, {vr(bt,2)}, {c}")

def wide_publish(a, ACC, PK, vFO, cb, nlanes_mask):
    for b in range(2):
        for e in range(8):
            a(f"v_min_u32 v{PK+8*b+e}, s{S_C1}, v{ACC+4*e+b}")
    a(f"s_mov_b64 exec, {nlanes_mask}")
    for b in range(2):
        a(f"s_add_u32 s{S_TMP}, s{S_B3}, {(b*18 + 4*cb)*NPROD*128}")
        a(f"buffer_store_dwordx4 {vr(PK+8*b,4)}, v{vFO}, {S(SWS)}, s{S_TMP} offen sc1")
        a(f"buffer_store_dwordx4 {vr(PK+8*b+4,4)}, v{vFO}, {S(SWS)}, s{S_TMP} offen offset:16 sc1")
    a("s_mov_b64 exec, -1")

def rho_sum(a, ACC, T):
    regs = [ACC+4*e+b for e in range(8) for b in range(2)]
    for i, r in enumerate(regs): a(f"v_mov_b32 v{T+i}, v{r}")
    a.nop(2)
    for i, r in enumerate(regs): a(f"v_permlane16_swap_b32 v{r}, v{T+i}")
    a.nop(2)
    for i, r in enumerate(regs): a(f"v_add_f32_dpp v{r}, v{T+i}, v{r} row_ror:8 row_mask:0xf bank_mask:0xf")

def gen():
    a = A()
    hdr = open("gated_mix__gqa_block_cached__swiglu_ffn__decode.s.ref").read().split("\n")
    pre = [l for l in hdr if l.startswith(";") and "@launch" not in l]
    out = pre + [f"; @launch grid=(256,1,1) block=(768,1,1) lds={LDS_BYTES}",
                 '.amdgcn_target "amdgcn-amd-amdhsa--gfx950"', ".text", f".globl {KN}", ".p2align 8",
                 f".type {KN},@function", f"{KN}:"]
    a("s_cmp_ge_u32 s2, 256\ns_cbranch_scc1 L_end")
    a("s_load_dwordx16 s[36:51], s[0:1], 0\ns_load_dwordx8 s[52:59], s[0:1], 64\ns_load_dwordx2 s[60:61], s[0:1], 96")
    a("v_lshrrev_b32 v1, 6, v0\nv_and_b32 v0, 63, v0\ns_nop 0")
    a(f"v_readfirstlane_b32 s{S_WAVE}, v1")
    a("v_mov_b32 v1, 0\nv_mov_b32 v2, 1")
    a(f"s_lshr_b32 s{S_U}, s2, 4\ns_add_u32 s{S_T}, s2, s{S_U}\ns_and_b32 s{S_T}, s{S_T}, 15")
    a(f"s_mov_b32 s{S_KVH}, s{S_U}\ns_and_b32 s{S_SPL}, s2, 15")
    a(f"s_mov_b32 s{S_SELLO}, 0x05040100\ns_mov_b32 s{S_SELHI}, 0x07060302\ns_mov_b32 s{S_C1}, 0xfffffffe")
    l1 = a.new(); l2 = a.new(); l3 = a.new()
    a(f"s_cmp_lt_u32 s{S_T}, 9\ns_cbranch_scc0 {l1}")
    a(f"s_mov_b32 s{S_ROLE}, 0\ns_mul_i32 s{S_RIDX}, s{S_U}, 9\ns_add_u32 s{S_RIDX}, s{S_RIDX}, s{S_T}\ns_add_u32 s{S_PROD}, s{S_RIDX}, 64\ns_branch {l3}")
    a.lab(l1)
    a(f"s_cmp_lt_u32 s{S_T}, 13\ns_cbranch_scc0 {l2}")
    a(f"s_mov_b32 s{S_ROLE}, 1\ns_lshl_b32 s{S_RIDX}, s{S_U}, 2\ns_add_u32 s{S_RIDX}, s{S_RIDX}, s{S_T}\ns_sub_u32 s{S_RIDX}, s{S_RIDX}, 9\ns_mov_b32 s{S_PROD}, s{S_RIDX}\ns_branch {l3}")
    a.lab(l2)
    a(f"s_mul_i32 s{S_RIDX}, s{S_U}, 3\ns_add_u32 s{S_RIDX}, s{S_RIDX}, s{S_T}\ns_sub_u32 s{S_RIDX}, s{S_RIDX}, 13\ns_mov_b32 s{S_PROD}, 0")
    a(f"s_cmp_lt_u32 s{S_RIDX}, 36\ns_cselect_b32 s{S_ROLE}, 2, 3")
    a.lab(l3)
    a(f"s_lshl_b32 s{S_B3}, s{S_PROD}, 7\ns_add_u32 s{S_B3}, s{S_B3}, {FP}")
    a("s_waitcnt lgkmcnt(0)")
    srd(a, SX, P_X, 2304)
    srd(a, SWS, P_WS, 0x10000000)
    srd(a, SDBG, P_DBG, 256)
    a(f"s_cmp_ge_u32 s{S_WAVE}, 4\ns_cbranch_scc1 L_att")
    a(f"s_cmp_eq_u32 s{S_WAVE}, 0\ns_cbranch_scc1 L_x0")
    a(f"s_cmp_eq_u32 s{S_WAVE}, 1\ns_cbranch_scc1 L_x1")
    a("s_barrier")
    a(f"s_cmp_eq_u32 s{S_WAVE}, 3\ns_cbranch_scc0 L_aux2")
    a(f"s_cmp_eq_u32 s{S_ROLE}, 2\ns_cbranch_scc0 L_aux2")
    srd(a, SA, P_GW, 1152)
    a("v_and_b32 v3, 31, v0\nv_mul_u32_u24 v3, 36, v3\nv_lshrrev_b32 v4, 5, v0\nv_mul_u32_u24 v4, 1152, v4\nv_add_u32 v4, v4, v3")
    for i in range(9):
        a(f"buffer_load_dword v{16+i}, v4, {S(SX)}, 0 offen offset:{4*i}")
        a(f"buffer_load_dword v{32+i}, v3, {S(SA)}, 0 offen offset:{4*i}")
    a("v_mov_b32 v5, 0\ns_waitcnt vmcnt(0)")
    for i in range(9):
        a(f"v_lshlrev_b32 v6, 16, v{16+i}\nv_and_b32 v7, 0xffff0000, v{16+i}\nv_lshlrev_b32 v8, 16, v{32+i}\nv_and_b32 v9, 0xffff0000, v{32+i}")
        a("v_mul_f32 v6, v6, v8\nv_mul_f32 v7, v7, v9\nv_cvt_pk_bf16_f32 v6, v6, v7")
        a("v_lshlrev_b32 v7, 16, v6\nv_and_b32 v6, 0xffff0000, v6\nv_add_f32 v5, v5, v7\nv_add_f32 v5, v5, v6")
    for k in (1, 2, 4, 8):
        a.nop(2)
        a(f"v_add_f32_dpp v5, v5, v5 row_ror:{k} row_mask:0xf bank_mask:0xf")
    a("v_mov_b32 v6, v5")
    a.nop(2)
    a("v_permlane16_swap_b32 v5, v6")
    a.nop(1)
    a("v_add_f32 v5, v5, v6")
    a("v_cvt_pk_bf16_f32 v5, v5, v5\nv_and_b32 v5, 0xffff0000, v5")
    a("v_mul_f32 v6, 0xbfb8aa3b, v5\nv_exp_f32 v6, v6\ns_nop 0\nv_add_f32 v6, 1.0, v6\nv_rcp_f32 v6, v6\ns_nop 0")
    a("v_cvt_pk_bf16_f32 v6, v6, v6\nv_and_b32 v6, 0xffff0000, v6")
    a("v_lshrrev_b32 v7, 5, v0\nv_lshlrev_b32 v7, 2, v7")
    a(f"ds_write_b32 v7, v6 offset:{GATEL}")
    a("s_waitcnt lgkmcnt(0)")
    lds_inc(a, F_GATE, 1, 2)
    a("s_branch L_aux2")

    a.lab("L_x0")
    W = 16; XA = 140; ACC = 88; BT = 104; vO1, vO2, vL = 4, 5, 6
    srd(a, SA, P_WQ, 576*8192)
    a(f"s_and_b32 s{S_B0}, s2, 1\ns_mul_i32 s{S_B1}, s{S_B0}, 576")
    narrow_x_loads(a, XA, S_B1, 7, 8, 9)
    narrow_lane_offsets(a, 8192, vO1, vO2, 7, 8)
    a(f"s_mul_i32 s{S_B2}, s{S_B0}, {288*8192}\ns_lshr_b32 s{S_TMP}, s2, 1\ns_lshl_b32 s{S_TMP}, s{S_TMP}, 6\ns_add_u32 s{S_B2}, s{S_B2}, s{S_TMP}")
    narrow_loads(a, SA, 8192, S_B2, W, vO1, vO2)
    a("s_barrier")
    narrow_lds_addr(a, vL, GUL, 7)
    a("s_waitcnt vmcnt(0)")
    narrow_compute(a, W, XA, ACC, BT, vL, 7)
    a(f"v_lshlrev_b32 v7, 2, v0\nv_add_u32 v7, {GUL}, v7")
    a("s_waitcnt lgkmcnt(0)")
    a("ds_read2st64_b32 v[8:9], v7 offset0:0 offset1:1\nds_read2st64_b32 v[10:11], v7 offset0:2 offset1:3")
    a("s_waitcnt lgkmcnt(0)")
    a("v_add_f32 v8, v8, v9\nv_add_f32 v10, v10, v11\nv_add_f32 v8, v8, v10")
    a(f"v_min_u32 v8, s{S_C1}, v8")
    a("v_lshrrev_b32 v9, 5, v0\nv_lshlrev_b32 v9, 14, v9\nv_and_b32 v10, 31, v0\nv_lshl_add_u32 v9, v10, 2, v9")
    wait_lds(a, F_INIT, 1, 1, 10)
    a(f"s_lshl_b32 s{S_B2}, s{S_B0}, 15\ns_lshr_b32 s{S_TMP}, s2, 1\ns_lshl_b32 s{S_TMP}, s{S_TMP}, 7\ns_add_u32 s{S_B2}, s{S_B2}, s{S_TMP}")
    a(f"buffer_store_dword v8, v9, {S(SWS)}, s{S_B2} offen offset:{QP} sc1")
    stamp(a, 1)
    a("s_branch L_aux2")

    a.lab("L_x1")
    stamp(a, 0)
    a("v_lshlrev_b32 v3, 2, v0")
    a("ds_write_b32 v3, v1")
    a("v_mov_b32 v16, -1\nv_mov_b32 v17, -1\nv_mov_b32 v18, -1\nv_mov_b32 v19, -1")
    a("v_lshrrev_b32 v9, 5, v0\nv_lshlrev_b32 v9, 14, v9\nv_and_b32 v10, 31, v0\nv_lshl_add_u32 v9, v10, 2, v9")
    a(f"s_and_b32 s{S_B0}, s2, 1\ns_lshl_b32 s{S_B2}, s{S_B0}, 15\ns_lshr_b32 s{S_TMP}, s2, 1\ns_lshl_b32 s{S_TMP}, s{S_TMP}, 7\ns_add_u32 s{S_B2}, s{S_B2}, s{S_TMP}")
    a(f"buffer_store_dword v16, v9, {S(SWS)}, s{S_B2} offen offset:{QP} sc1")
    a("v_lshrrev_b32 v9, 4, v0\nv_lshlrev_b32 v9, 13, v9\nv_and_b32 v10, 15, v0\nv_lshl_add_u32 v9, v10, 4, v9")
    a(f"s_lshl_b32 s{S_B2}, s{S_KVH}, 15\ns_lshl_b32 s{S_TMP}, s{S_SPL}, 9\ns_add_u32 s{S_B2}, s{S_B2}, s{S_TMP}\ns_add_u32 s{S_B2}, s{S_B2}, {OP}")
    a(f"buffer_store_dwordx4 v[16:19], v9, {S(SWS)}, s{S_B2} offen sc1")
    a(f"buffer_store_dwordx4 v[16:19], v9, {S(SWS)}, s{S_B2} offen offset:256 sc1")
    a("v_lshlrev_b32 v9, 8, v0")
    a(f"s_lshl_b32 s{S_B2}, s{S_KVH}, 9\ns_lshl_b32 s{S_TMP}, s{S_SPL}, 4\ns_add_u32 s{S_B2}, s{S_B2}, s{S_TMP}\ns_add_u32 s{S_B2}, s{S_B2}, {ST}")
    a("s_mov_b64 exec, 3")
    a(f"buffer_store_dwordx4 v[16:19], v9, {S(SWS)}, s{S_B2} offen sc1")
    a("s_mov_b64 exec, -1")
    lskip = a.new()
    a(f"s_cmp_gt_u32 s{S_ROLE}, 1\ns_cbranch_scc1 {lskip}")
    a(f"v_lshrrev_b32 v9, 3, v0\ns_mov_b32 s{S_TMP}, {NPROD*128}\nv_mul_lo_u32 v9, v9, s{S_TMP}\nv_and_b32 v10, 7, v0\nv_lshl_add_u32 v9, v10, 4, v9")
    for i in range(5):
        if i == 4: a("s_mov_b32 exec_lo, -1\ns_mov_b32 exec_hi, 0")
        a(f"s_add_u32 s{S_TMP}, s{S_B3}, {i*8*NPROD*128}")
        a(f"buffer_store_dwordx4 v[16:19], v9, {S(SWS)}, s{S_TMP} offen sc1")
    a("s_mov_b64 exec, -1")
    a.lab(lskip)
    a("s_waitcnt lgkmcnt(0)")
    a("s_barrier")
    a("s_waitcnt vmcnt(0)")
    lds_inc(a, F_INIT, 1, 2)
    a("s_mov_b64 exec, 1")
    if DIAG:
        a(f"s_and_b32 s{S_TMP}, s2, 31\ns_lshl_b32 s{S_TMP}, 1, s{S_TMP}\nv_mov_b32 v9, s{S_TMP}\ns_lshr_b32 s{S_TMP}, s2, 5\ns_lshl_b32 s{S_TMP}, s{S_TMP}, 2")
        a(f"buffer_atomic_or v9, v1, {S(SDBG)}, s{S_TMP} offen offset:128")
    else:
        a(f"buffer_store_byte v2, v1, {S(SDBG)}, s2 offen sc1")
    a("s_mov_b64 exec, -1")
    l = a.new("G"); d = a.new("GD")
    a(f"s_mov_b32 s{S_CNT}, 0\ns_lshl_b32 s{S_B2}, s{S_KVH}, 4\ns_mov_b32 s{S_TMP2}, 0x01010101")
    a("s_sleep 48")
    a.lab(l)
    if DIAG:
        a(f"s_lshl_b32 s{S_B2}, s{S_KVH}, 1\ns_mov_b32 s{S_TMP2}, 0xffff")
        a(f"buffer_load_ushort v16, v1, {S(SDBG)}, s{S_B2} offen offset:128 sc1")
        a("s_waitcnt vmcnt(0)")
    else:
        a(f"buffer_load_dwordx4 v[16:19], v1, {S(SDBG)}, s{S_B2} offen sc1")
        a("s_waitcnt vmcnt(0)")
        a("v_and_b32 v16, v16, v17\nv_and_b32 v18, v18, v19\nv_and_b32 v16, v16, v18\ns_nop 0")
    a(f"v_readfirstlane_b32 s{S_TMP}, v16")
    a(f"s_cmp_eq_u32 s{S_TMP}, s{S_TMP2}\ns_cbranch_scc1 {d}")
    a(f"s_add_u32 s{S_CNT}, s{S_CNT}, 1\ns_cmp_gt_u32 s{S_CNT}, {SPIN_LIMIT}\ns_cbranch_scc1 {d}")
    a(f"s_sleep 16\ns_branch {l}")
    a.lab(d)
    stamp(a, 2)
    a("v_lshlrev_b32 v9, 4, v0")
    a(f"s_lshl_b32 s{S_B2}, s{S_KVH}, 10\ns_add_u32 s{S_B2}, s{S_B2}, {QP}")
    def ld():
        for ks in range(2):
            for b in range(2):
                a(f"s_add_u32 s{S_TMP}, s{S_B2}, {ks*32768 + b*16384}")
                a(f"buffer_load_dwordx4 {vr(16+(ks*2+b)*4,4)}, v9, {S(SWS)}, s{S_TMP} offen sc1")
    poll_loop(a, ld, range(16, 32), 10, sleep=4)
    for b in range(2):
        for i in range(4):
            a(f"v_add_f32 v{16+b*4+i}, v{16+b*4+i}, v{24+b*4+i}")
        a(f"v_cvt_pk_bf16_f32 v{32+2*b}, v{16+b*4}, v{17+b*4}\nv_cvt_pk_bf16_f32 v{33+2*b}, v{18+b*4}, v{19+b*4}")
    a("v_lshlrev_b32 v9, 3, v0")
    a(f"ds_write_b64 v9, v[32:33] offset:{QL}\nds_write_b64 v9, v[34:35] offset:{QL+512}")
    a("s_waitcnt lgkmcnt(0)")
    lds_inc(a, F_Q, 1, 2)
    stamp(a, 3)

    a.lab("L_aux2")
    a(f"s_cmp_eq_u32 s{S_ROLE}, 0\ns_cbranch_scc1 L_ffn")
    a(f"s_cmp_eq_u32 s{S_ROLE}, 1\ns_cbranch_scc1 L_wo")
    a(f"s_cmp_eq_u32 s{S_ROLE}, 2\ns_cbranch_scc1 L_red")
    a("s_endpgm")

    a.lab("L_ffn")
    W = 16; WD = 88; WH = 120; XA = 136; ACC = 146+2; BT = 164-6
    ACC = 148; BT = 4
    vO1, vO2, vL, vOW, vFO = 164, 165, 166, 167, 164
    lm = a.new(); lm2 = a.new()
    a(f"s_and_b32 s{S_TMP}, s{S_WAVE}, 1\ns_cmp_eq_u32 s{S_TMP}, 0\ns_cbranch_scc0 {lm}")
    srd(a, SA, P_WG, 576*9216)
    a(f"s_branch {lm2}")
    a.lab(lm)
    srd(a, SA, P_WU, 576*9216)
    a.lab(lm2)
    srd(a, SB, P_WD, 4608*1152)
    a(f"s_lshr_b32 s{S_B0}, s{S_WAVE}, 1\ns_mul_i32 s{S_B1}, s{S_B0}, 576")
    narrow_x_loads(a, XA, S_B1, 7, 8, 9)
    narrow_lane_offsets(a, 9216, vO1, vO2, 7, 8)
    a(f"s_mul_i32 s{S_B2}, s{S_B0}, {288*9216}\ns_lshl_b32 s{S_TMP}, s{S_RIDX}, 6\ns_add_u32 s{S_B2}, s{S_B2}, s{S_TMP}")
    a(f"v_lshrrev_b32 v7, 4, v0\nv_mul_u32_u24 v{vOW}, {8*1152}, v7\nv_and_b32 v8, 15, v0\nv_lshl_add_u32 v{vOW}, v8, 4, v{vOW}")
    a(f"s_lshl_b32 s{S_TMP}, s{S_WAVE}, 10\ns_add_u32 s{S_B1}, s{S_TMP}, {GUL}")
    narrow_lds_addr(a, vL, 0, 7)
    a(f"v_add_u32 v{vL}, s{S_B1}, v{vL}")
    a(f"v_bfe_u32 v7, v0, 3, 1\nv_lshrrev_b32 v8, 4, v0\nv_lshlrev_b32 v7, 4, v7\nv_lshl_add_u32 v7, v8, 2, v7\nv_mul_u32_u24 v13, 1152, v7\nv_and_b32 v8, 7, v0\nv_lshl_add_u32 v13, v8, 4, v13")
    wait_lds(a, F_GO, 8, 1, 10)
    stamp(a, 4)
    narrow_loads(a, SA, 9216, S_B2, W, vO1, vO2)
    a(f"s_mul_i32 s{S_B0}, s{S_RIDX}, {32*1152}")
    a(f"s_lshl_b32 s{S_TMP}, s{S_WAVE}, 8\ns_add_u32 s{S_B2}, s{S_B0}, s{S_TMP}")
    wide_loads(a, SB, S_B2, WD, vOW)
    lnh = a.new(); lj = a.new()
    a(f"s_cmp_eq_u32 s{S_WAVE}, 0\ns_cbranch_scc0 {lnh}")
    for j in range(4):
        a(f"s_add_u32 s{S_TMP}, s{S_B0}, {j*1152 + 1024}")
        a(f"buffer_load_dwordx4 {vr(WH+4*j,4)}, v13, {S(SB)}, s{S_TMP} offen nt")
    a("s_waitcnt vmcnt(12)")
    a(f"s_branch {lj}")
    a.lab(lnh)
    a("s_waitcnt vmcnt(8)")
    a.lab(lj)
    narrow_compute(a, W, XA, ACC, BT, vL, 14)
    a(f"v_bfe_u32 v7, v0, 2, 2\ns_mov_b32 s{S_TMP}, {NPROD*128}\nv_mul_lo_u32 v{vFO}, v7, s{S_TMP}\nv_and_b32 v8, 3, v0\nv_lshl_add_u32 v{vFO}, v8, 5, v{vFO}")
    a("s_waitcnt lgkmcnt(0)")
    lds_inc(a, F_GU, 1, 2)
    wait_lds(a, F_GU, 4, 1, 10)
    a(f"v_lshlrev_b32 v7, 2, v0\nv_add_u32 v7, {GUL}, v7")
    for w in range(4):
        for r2 in range(2):
            a(f"ds_read2st64_b32 {vr(16+w*4+r2*2,2)}, v7 offset0:{w*4+r2*2} offset1:{w*4+r2*2+1}")
    a("s_waitcnt lgkmcnt(0)")
    for w in range(4):
        a(f"v_add_f32 v{16+4*w}, v{16+4*w}, v{17+4*w}\nv_add_f32 v{18+4*w}, v{18+4*w}, v{19+4*w}\nv_add_f32 v{16+4*w}, v{16+4*w}, v{18+4*w}")
    a("v_add_f32 v16, v16, v24\nv_add_f32 v20, v20, v28")
    a("v_cvt_pk_bf16_f32 v16, v16, v20\nv_and_b32 v20, 0xffff0000, v16\nv_lshlrev_b32 v16, 16, v16")
    a("v_mul_f32 v17, 0xbfb8aa3b, v16\nv_exp_f32 v17, v17\ns_nop 0\nv_add_f32 v17, 1.0, v17\nv_rcp_f32 v17, v17\ns_nop 0\nv_mul_f32 v17, v16, v17")
    a("v_cvt_pk_bf16_f32 v17, v17, v17\nv_and_b32 v17, 0xffff0000, v17\nv_mul_f32 v17, v17, v20\nv_cvt_pk_bf16_f32 v17, v17, v17")
    a(f"s_lshl_b32 s{S_TMP}, s{S_WAVE}, 7\ns_add_u32 s{S_TMP}, s{S_TMP}, {HL}")
    a(f"v_lshlrev_b32 v7, 1, v0\nv_add_u32 v7, s{S_TMP}, v7")
    a("ds_write_b16 v7, v17")
    a(f"v_and_b32 v8, 1, v0\nv_lshlrev_b32 v8, 6, v8\nv_add_u32 v8, s{S_TMP}, v8\nv_lshrrev_b32 v9, 4, v0\nv_lshl_add_u32 v10, v9, 4, v8")
    a("v_lshl_add_u32 v8, v9, 3, v8\nv_bfe_u32 v9, v0, 2, 1\nv_lshl_add_u32 v8, v9, 5, v8")
    a("s_waitcnt lgkmcnt(0)")
    a(f"ds_read_b128 {vr(XA,4)}, v10\nds_read_b64 {vr(XA+4,2)}, v8")
    ACCW = 16; PK = 48; BTW = 64; ACCH = 16; TT = 72
    a("s_waitcnt lgkmcnt(0)")
    lnh = a.new(); lj = a.new()
    a(f"s_cmp_eq_u32 s{S_WAVE}, 0\ns_cbranch_scc0 {lnh}")
    a("s_waitcnt vmcnt(4)")
    a(f"s_branch {lj}")
    a.lab(lnh)
    a("s_waitcnt vmcnt(0)")
    a.lab(lj)
    wide_compute(a, [(WD, XA)], ACCW, BTW)
    a.nop(8)
    a(f"s_mul_i32 s{S_TMP2}, s{S_WAVE}, {4*NPROD*128}\ns_add_u32 s{S_B3}, s{S_B3}, s{S_TMP2}")
    wide_publish(a, ACCW, PK, vFO, 0, "0xffff")
    lend = a.new()
    a(f"s_cmp_eq_u32 s{S_WAVE}, 0\ns_cbranch_scc0 {lend}")
    a("s_waitcnt vmcnt(4)")
    wide_compute(a, [(WH, XA+4)], ACCH, BTW, nk=4)
    a.nop(8)
    rho_sum(a, ACCH, 148)
    wide_publish(a, ACCH, 88, vFO, 4, "0xff")
    a.lab(lend)
    stamp(a, 5)
    a("s_endpgm")

    a.lab("L_wo")
    W0 = 16; W1 = 48; WH = 80; OA = 112; ACCW = 120; BTW = 4; PK = 152-0
    vOW, vFO, vOHh = 164, 165, 166
    srd(a, SB, P_WO, 4096*1152)
    a(f"v_lshrrev_b32 v7, 4, v0\nv_mul_u32_u24 v{vOW}, {8*1152}, v7\nv_and_b32 v8, 15, v0\nv_lshl_add_u32 v{vOW}, v8, 4, v{vOW}")
    a(f"v_bfe_u32 v7, v0, 2, 2\ns_mov_b32 s{S_TMP}, {NPROD*128}\nv_mul_lo_u32 v{vFO}, v7, s{S_TMP}\nv_and_b32 v8, 3, v0\nv_lshl_add_u32 v{vFO}, v8, 5, v{vFO}")
    a(f"v_bfe_u32 v7, v0, 3, 1\nv_lshrrev_b32 v8, 4, v0\nv_lshlrev_b32 v7, 5, v7\nv_lshl_add_u32 v7, v8, 3, v7\nv_mul_u32_u24 v{vOHh}, 1152, v7\nv_and_b32 v8, 7, v0\nv_lshl_add_u32 v{vOHh}, v8, 4, v{vOHh}")
    a(f"s_mul_i32 s{S_B0}, s{S_RIDX}, {64*1152}")
    a(f"s_lshl_b32 s{S_TMP}, s{S_WAVE}, 8\ns_add_u32 s{S_B2}, s{S_B0}, s{S_TMP}\ns_add_u32 s{S_B1}, s{S_B2}, {32*1152}")
    wait_lds(a, F_GO, 8, 1, 10)
    wide_loads(a, SB, S_B2, W0, vOW)
    wide_loads(a, SB, S_B1, W1, vOW)
    lnh = a.new()
    a(f"s_cmp_eq_u32 s{S_WAVE}, 0\ns_cbranch_scc0 {lnh}")
    a(f"s_add_u32 s{S_B1}, s{S_B0}, 1024")
    wide_loads(a, SB, S_B1, WH, vOHh)
    a.lab(lnh)
    a(f"v_and_b32 v8, 1, v0\nv_lshlrev_b32 v8, 7, v8\nv_lshrrev_b32 v9, 4, v0\nv_lshl_add_u32 v8, v9, 4, v8\nv_bfe_u32 v9, v0, 2, 1\nv_lshl_add_u32 v9, v9, 6, v8")
    wait_lds(a, F_O, 1, 1, 10)
    a(f"ds_read_b128 {vr(OA,4)}, v8 offset:{OL}\nds_read_b128 {vr(OA+4,4)}, v8 offset:{OL+64}\nds_read_b128 v[160:163], v9 offset:{OL}")
    a("s_waitcnt vmcnt(0) lgkmcnt(0)")
    wide_compute(a, [(W0, OA), (W1, OA+4)], ACCW, BTW)
    a.nop(8)
    a(f"s_mul_i32 s{S_TMP2}, s{S_WAVE}, {4*NPROD*128}\ns_add_u32 s{S_B3}, s{S_B3}, s{S_TMP2}")
    wide_publish(a, ACCW, 16, vFO, 0, "0xffff")
    lend = a.new()
    a(f"s_cmp_eq_u32 s{S_WAVE}, 0\ns_cbranch_scc0 {lend}")
    wide_compute(a, [(WH, 160)], ACCW, BTW)
    a.nop(8)
    rho_sum(a, ACCW, 48)
    wide_publish(a, ACCW, 64, vFO, 4, "0xff")
    a.lab(lend)
    stamp(a, 6)
    a("s_endpgm")

    a.lab("L_red")
    srd(a, SOUT, P_OUT, 2304)
    a("v_lshlrev_b32 v9, 4, v0")
    a(f"s_mul_i32 s{S_B2}, s{S_RIDX}, {NPROD*128}\ns_add_u32 s{S_B2}, s{S_B2}, {FP}")
    wait_lds(a, F_Q, 1, 1, 10)
    wait_lds(a, F_CB0, 4, 1, 10)
    wait_lds(a, F_CB1, 4, 1, 10)
    l = a.new("G"); d = a.new("GD")
    a(f"s_mov_b32 s{S_CNT}, 0\nv_lshlrev_b32 v11, 2, v0\ns_mov_b32 s{S_TMP2}, 0x01010101")
    a.lab(l)
    if DIAG:
        a(f"v_and_b32 v11, 28, v11\ns_mov_b32 s{S_TMP2}, -1")
        a(f"buffer_load_dword v16, v11, {S(SDBG)}, 0 offen offset:128 sc1")
    else:
        a(f"buffer_load_dword v16, v11, {S(SDBG)}, 0 offen sc1")
    a("s_waitcnt vmcnt(0)")
    a(f"v_cmp_ne_u32 vcc, s{S_TMP2}, v16")
    a(f"s_cbranch_vccz {d}")
    a(f"s_add_u32 s{S_CNT}, s{S_CNT}, 1\ns_cmp_gt_u32 s{S_CNT}, {SPIN_LIMIT}\ns_cbranch_scc1 {d}")
    a(f"s_sleep 16\ns_branch {l}")
    a.lab(d)
    lb = a.new(); lj = a.new()
    a(f"s_cmp_eq_u32 s{S_WAVE}, 0\ns_cbranch_scc0 {lb}")
    def mk(n):
        def ld():
            for i in range(n):
                a(f"s_add_u32 s{S_TMP}, s{S_B2}, {i*1024}")
                a(f"buffer_load_dwordx4 {vr(16+4*i,4)}, v9, {S(SWS)}, s{S_TMP} offen sc1")
        return ld
    poll_loop(a, mk(1), range(16, 20), 10, sleep=4)
    poll_loop(a, mk(8), range(16, 48), 10, sleep=2)
    for i in (6, 7):
        for k in range(4): a(f"v_add_f32 v{16+4*(i-6)+k}, v{16+4*(i-6)+k}, v{16+4*i+k}")
    a(f"s_branch {lj}")
    a.lab(lb)
    a(f"s_mul_i32 s{S_TMP}, s{S_WAVE}, {48*128}\ns_add_u32 s{S_B2}, s{S_B2}, s{S_TMP}\ns_add_u32 s{S_B2}, s{S_B2}, {(64-48)*128}")
    poll_loop(a, mk(1), range(16, 20), 10, sleep=4)
    poll_loop(a, mk(6), range(16, 40), 10, sleep=2)
    a.lab(lj)
    for k in range(4):
        a(f"v_add_f32 v{16+k}, v{16+k}, v{20+k}\nv_add_f32 v{24+k}, v{24+k}, v{28+k}\nv_add_f32 v{32+k}, v{32+k}, v{36+k}")
    for k in range(4):
        a(f"v_add_f32 v{16+k}, v{16+k}, v{24+k}")
    for k in range(4):
        a(f"v_add_f32 v{16+k}, v{16+k}, v{32+k}")
    a.nop(2)
    for k in range(4):
        a(f"v_add_f32_dpp v{16+k}, v{16+k}, v{16+k} row_ror:8 row_mask:0xf bank_mask:0xf")
    for sw in ("v_permlane16_swap_b32", "v_permlane32_swap_b32"):
        for k in range(4): a(f"v_mov_b32 v{20+k}, v{16+k}")
        a.nop(2)
        for k in range(4): a(f"{sw} v{16+k}, v{20+k}")
        a.nop(1)
        for k in range(4): a(f"v_add_f32 v{16+k}, v{16+k}, v{20+k}")
    a(f"s_lshl_b32 s{S_TMP}, s{S_WAVE}, 7\nv_add_u32 v9, s{S_TMP}, v9")
    a("s_mov_b64 exec, 0xff")
    a(f"ds_write_b128 v9, v[16:19] offset:{REDL}")
    a("s_mov_b64 exec, 1")
    a(f"ds_add_rtn_u32 v10, v1, v2 offset:{F_RED}")
    a("s_mov_b64 exec, -1")
    a("s_waitcnt lgkmcnt(0)")
    a(f"v_readfirstlane_b32 s{S_TMP}, v10")
    a(f"s_cmp_eq_u32 s{S_TMP}, 3\ns_cbranch_scc0 L_end")
    wait_lds(a, F_GATE, 1, 1, 10)
    a("v_lshlrev_b32 v9, 2, v0")
    a(f"ds_read_b32 v16, v9 offset:{REDL}\nds_read_b32 v17, v9 offset:{REDL+128}\nds_read_b32 v18, v9 offset:{REDL+256}\nds_read_b32 v19, v9 offset:{REDL+384}")
    a(f"s_cmp_ge_u32 s{S_RIDX}, 18\ns_cselect_b32 s{S_TMP}, 4, 0\nv_mov_b32 v11, s{S_TMP}")
    a(f"ds_read_b32 v20, v11 offset:{GATEL}")
    a("s_waitcnt lgkmcnt(0)")
    a("v_add_f32 v17, v17, v18\nv_add_f32 v17, v17, v19")
    a("v_sub_f32 v21, 1.0, v20")
    a("v_cvt_pk_bf16_f32 v16, v16, v17\nv_cvt_pk_bf16_f32 v21, v21, v21")
    a("v_and_b32 v17, 0xffff0000, v16\nv_lshlrev_b32 v16, 16, v16\nv_and_b32 v21, 0xffff0000, v21")
    a("v_mul_f32 v16, v20, v16\nv_mul_f32 v17, v21, v17\nv_cvt_pk_bf16_f32 v16, v16, v17")
    a("v_and_b32 v17, 0xffff0000, v16\nv_lshlrev_b32 v16, 16, v16\nv_add_f32 v16, v16, v17\nv_cvt_pk_bf16_f32 v16, v16, v16")
    a(f"v_lshlrev_b32 v9, 1, v0\ns_lshl_b32 s{S_TMP}, s{S_RIDX}, 6")
    a("s_mov_b32 exec_lo, -1\ns_mov_b32 exec_hi, 0")
    a(f"buffer_store_short v16, v9, {S(SOUT)}, s{S_TMP} offen")
    stamp(a, 7)
    a("s_endpgm")

    a.lab("L_att")
    KR = 16; VRG = 80; QB = 144; S01 = 160
    srd(a, SA, P_K, 0x2000000)
    srd(a, SB, P_V, 0x2000000)
    a(f"s_sub_u32 s{S_B0}, s{S_WAVE}, 4\ns_and_b32 s{S_B1}, s{S_B0}, 1\ns_lshr_b32 s{S_B2}, s{S_B0}, 1")
    a(f"s_lshl_b32 s{S_TMP}, s{S_B1}, 4\ns_add_u32 s{S_TMP}, s{S_TMP}, s{S_KVH}\ns_lshl_b32 s{S_C2}, s{S_TMP}, 20")
    a(f"s_lshl_b32 s{S_TMP}, s{S_SPL}, 16\ns_add_u32 s{S_C2}, s{S_C2}, s{S_TMP}\ns_lshl_b32 s{S_TMP}, s{S_B2}, 14\ns_add_u32 s{S_C2}, s{S_C2}, s{S_TMP}")
    a("v_and_b32 v3, 15, v0\nv_lshrrev_b32 v4, 4, v0")
    a("v_lshlrev_b32 v5, 8, v3\nv_lshl_add_u32 v5, v4, 4, v5")
    a("v_lshlrev_b32 v6, 10, v4\nv_lshl_add_u32 v6, v3, 4, v6")
    a("s_barrier")
    for T in range(4):
        a(f"s_add_u32 s{S_TMP}, s{S_C2}, {T*4096}")
        for j in range(4):
            a(f"buffer_load_dwordx4 {vr(KR+(T*4+j)*4,4)}, v5, {S(SA)}, s{S_TMP} offen offset:{j*64} nt")
    for T in range(4):
        a(f"s_add_u32 s{S_TMP}, s{S_C2}, {T*4096}")
        for r in range(4):
            a(f"buffer_load_dwordx4 {vr(VRG+(T*4+r)*4,4)}, v6, {S(SB)}, s{S_TMP} offen offset:{r*256} nt")
    lds_inc(a, F_GO, 1, 2)
    a("v_and_b32 v7, 1, v0\nv_lshlrev_b32 v7, 4, v7\nv_mov_b32 v12, 0xffff\nv_lshlrev_b32 v12, v7, v12\nv_bfe_u32 v7, v0, 1, 2")
    for u in range(4):
        a(f"v_cmp_eq_u32 vcc, {u}, v7\ns_nop 1\nv_cndmask_b32 v{8+u}, 0, v12, vcc")
    a(f"v_bfe_u32 v7, v0, 3, 1\nv_lshlrev_b32 v7, 8, v7\nv_lshl_add_u32 v7, v4, 4, v7\ns_lshl_b32 s{S_TMP}, s{S_B1}, 9\nv_add_u32 v7, s{S_TMP}, v7")
    wait_lds(a, F_Q, 1, 1, 12)
    for j in range(4):
        a(f"ds_read_b128 {vr(QB+4*j,4)}, v7 offset:{QL+64*j}")
    a("s_waitcnt lgkmcnt(0)")
    SR = [S01, S01+4, KR, KR+4]
    for T in range(4):
        a(f"s_waitcnt vmcnt({16 + 12 - 4*T})")
        for j in range(4):
            c = "0" if j == 0 else vr(SR[T], 4)
            a(f"v_mfma_f32_16x16x32_bf16 {vr(SR[T],4)}, {vr(KR+(T*4+j)*4,4)}, {vr(QB+4*j,4)}, {c}")
    a.nop(8)
    sreg = [SR[T]+r for T in range(4) for r in range(4)]
    a(f"s_mov_b32 s{S_TMP}, 0x3db504f3\ns_mov_b32 s{S_TMP2}, 0x3fb8aa3b")
    for i in range(0, 16, 2):
        x, y = sreg[i], sreg[i+1]
        a(f"v_cvt_pk_bf16_f32 v12, v{x}, v{y}\nv_lshlrev_b32 v{x}, 16, v12\nv_and_b32 v{y}, 0xffff0000, v12")
        a(f"v_mul_f32 v{x}, s{S_TMP}, v{x}\nv_mul_f32 v{y}, s{S_TMP}, v{y}")
        a(f"v_cvt_pk_bf16_f32 v12, v{x}, v{y}\nv_lshlrev_b32 v{x}, 16, v12\nv_and_b32 v{y}, 0xffff0000, v12")
    a(f"v_max3_f32 v12, v{sreg[0]}, v{sreg[1]}, v{sreg[2]}")
    for i in range(3, 15, 2):
        a(f"v_max3_f32 v12, v12, v{sreg[i]}, v{sreg[i+1]}")
    a(f"v_max_f32 v12, v12, v{sreg[15]}")
    for sw in ("v_permlane16_swap_b32", "v_permlane32_swap_b32"):
        a("v_mov_b32 v13, v12")
        a.nop(2)
        a(f"{sw} v12, v13")
        a.nop(1)
        a("v_max_f32 v12, v12, v13")
    a(f"v_mul_f32 v12, s{S_TMP2}, v12")
    for r in sreg:
        a(f"v_fma_f32 v{r}, v{r}, s{S_TMP2}, -v12")
    for r in sreg:
        a(f"v_exp_f32 v{r}, v{r}")
    a.nop(1)
    a(f"v_add_f32 v13, v{sreg[0]}, v{sreg[1]}")
    for r in sreg[2:]:
        a(f"v_add_f32 v13, v13, v{r}")
    AP = [24+4*i for i in range(14)] + [QB, QB+4]
    for i, r in enumerate(sreg):
        a(f"v_cvt_pk_bf16_f32 v14, v{r}, v{r}")
        for u in range(4):
            a(f"v_and_b32 v{AP[i]+u}, v14, v{8+u}")
    for sw in ("v_permlane16_swap_b32", "v_permlane32_swap_b32"):
        a("v_mov_b32 v14, v13")
        a.nop(2)
        a(f"{sw} v13, v14")
        a.nop(1)
        a("v_add_f32 v13, v13, v14")
    a(f"v_bfe_u32 v14, v0, 3, 1\nv_lshlrev_b32 v14, 3, v14\ns_lshl_b32 s{S_TMP}, s{S_B0}, 4\nv_add_u32 v14, s{S_TMP}, v14")
    a("s_mov_b64 exec, 0x101")
    a(f"ds_write_b64 v14, v[12:13] offset:{STL}")
    a("s_mov_b64 exec, -1")
    OACC = [QB+8, QB+12]
    for i in range(16):
        a(f"s_waitcnt vmcnt({15-i})")
        c = "0" if i < 2 else vr(OACC[i & 1], 4)
        a(f"v_mfma_f32_16x16x32_bf16 {vr(OACC[i&1],4)}, {vr(AP[i],4)}, {vr(VRG+4*i,4)}, {c}")
    a(f"v_lshrrev_b32 v14, 5, v0\nv_lshlrev_b32 v14, 9, v14\nv_lshl_add_u32 v14, v3, 5, v14\nv_and_b32 v15, 1, v4\nv_lshl_add_u32 v14, v15, 4, v14\ns_lshl_b32 s{S_TMP}, s{S_B0}, 10\nv_add_u32 v14, s{S_TMP}, v14")
    a.nop(3)
    for k in range(4):
        a(f"v_add_f32 v{16+k}, v{OACC[0]+k}, v{OACC[1]+k}")
    a(f"ds_write_b128 v14, v[16:19] offset:{OB}")
    a(f"s_lshl_b32 s{S_TMP}, s{S_B1}, 2\nv_mov_b32 v15, s{S_TMP}")
    a("s_mov_b64 exec, 1")
    a(f"ds_add_rtn_u32 v14, v15, v2 offset:{F_CB0}")
    a("s_mov_b64 exec, -1")
    a("s_waitcnt lgkmcnt(0)")
    a(f"v_readfirstlane_b32 s{S_TMP}, v14")
    a(f"s_cmp_eq_u32 s{S_TMP}, 3\ns_cbranch_scc0 L_att_done")
    a(f"v_lshrrev_b32 v14, 5, v0\nv_lshlrev_b32 v15, 3, v14\ns_lshl_b32 s{S_TMP}, s{S_B1}, 4\nv_add_u32 v15, s{S_TMP}, v15")
    for wi in range(4):
        a(f"ds_read_b64 {vr(16+2*wi,2)}, v15 offset:{STL+32*wi}")
    a(f"v_lshlrev_b32 v15, 9, v14\nv_and_b32 v13, 31, v0\nv_lshl_add_u32 v15, v13, 4, v15\ns_lshl_b32 s{S_TMP}, s{S_B1}, 10\nv_add_u32 v15, s{S_TMP}, v15")
    for wi in range(4):
        a(f"ds_read_b128 {vr(24+4*wi,4)}, v15 offset:{OB+2048*wi}")
    a("s_waitcnt lgkmcnt(4)")
    a("v_max3_f32 v40, v16, v18, v20\nv_max_f32 v40, v40, v22")
    for wi in range(4):
        a(f"v_sub_f32 v{16+2*wi}, v{16+2*wi}, v40")
    for wi in range(4):
        a(f"v_exp_f32 v{16+2*wi}, v{16+2*wi}")
    a.nop(1)
    a("v_mul_f32 v41, v16, v17\nv_fmac_f32 v41, v18, v19\nv_fmac_f32 v41, v20, v21\nv_fmac_f32 v41, v22, v23")
    a("s_waitcnt lgkmcnt(0)")
    for k in range(4):
        a(f"v_mul_f32 v{44+k}, v16, v{24+k}")
        for wi in range(1, 4):
            a(f"v_fmac_f32 v{44+k}, v{16+2*wi}, v{24+4*wi+k}")
    for k in range(4):
        a(f"v_min_u32 v{44+k}, s{S_C1}, v{44+k}")
    a(f"v_min_u32 v40, s{S_C1}, v40\nv_min_u32 v41, s{S_C1}, v41")
    a("v_lshlrev_b32 v15, 13, v4\nv_lshl_add_u32 v15, v3, 4, v15")
    a(f"s_lshl_b32 s{S_C2}, s{S_KVH}, 15\ns_lshl_b32 s{S_TMP}, s{S_SPL}, 9\ns_add_u32 s{S_C2}, s{S_C2}, s{S_TMP}\ns_lshl_b32 s{S_TMP}, s{S_B1}, 8\ns_add_u32 s{S_C2}, s{S_C2}, s{S_TMP}\ns_add_u32 s{S_C2}, s{S_C2}, {OP}")
    a(f"buffer_store_dwordx4 v[44:47], v15, {S(SWS)}, s{S_C2} offen sc1")
    a("v_lshlrev_b32 v15, 8, v14")
    a(f"s_lshl_b32 s{S_C2}, s{S_KVH}, 9\ns_lshl_b32 s{S_TMP}, s{S_SPL}, 4\ns_add_u32 s{S_C2}, s{S_C2}, s{S_TMP}\ns_lshl_b32 s{S_TMP}, s{S_B1}, 3\ns_add_u32 s{S_C2}, s{S_C2}, s{S_TMP}\ns_add_u32 s{S_C2}, s{S_C2}, {ST}")
    a("s_mov_b32 exec_lo, 1\ns_mov_b32 exec_hi, 1")
    a(f"buffer_store_dwordx2 v[40:41], v15, {S(SWS)}, s{S_C2} offen sc1")
    a("s_mov_b64 exec, -1")
    stamp(a, 8)
    a.lab("L_att_done")
    a(f"s_cmp_eq_u32 s{S_B0}, 0\ns_cbranch_scc0 L_end")
    a(f"s_cmp_eq_u32 s{S_ROLE}, 1\ns_cbranch_scc0 L_end")
    a(f"s_lshr_b32 s{S_TMP}, s{S_RIDX}, 1\ns_lshl_b32 s{S_B2}, s{S_TMP}, 8\ns_add_u32 s{S_B2}, s{S_B2}, {ST}")
    a(f"s_lshl_b32 s{S_C2}, s{S_RIDX}, 13\ns_add_u32 s{S_C2}, s{S_C2}, {OP}")
    a("v_and_b32 v13, 31, v0\nv_lshlrev_b32 v13, 3, v13")
    a("v_lshlrev_b32 v14, 3, v4")
    a("v_lshlrev_b32 v15, 4, v0")
    def ld0():
        a(f"buffer_load_dwordx2 v[16:17], v13, {S(SWS)}, s{S_B2} offen sc1")
    poll_loop(a, ld0, [16, 17], 12, sleep=2)
    def ld1():
        for t in range(8):
            a(f"buffer_load_dwordx2 {vr(16+2*t,2)}, v14, {S(SWS)}, s{S_B2} offen offset:{32*t} sc1")
        for t in range(8):
            if t % 4 == 0: a(f"s_add_u32 s{S_TMP}, s{S_C2}, {t*1024}")
            a(f"buffer_load_dwordx4 {vr(32+4*t,4)}, v15, {S(SWS)}, s{S_TMP} offen offset:{(t%4)*1024} sc1")
    poll_loop(a, ld1, range(16, 64), 12, sleep=1)
    a("v_max3_f32 v12, v16, v18, v20\nv_max3_f32 v12, v12, v22, v24\nv_max3_f32 v12, v12, v26, v28\nv_max_f32 v12, v12, v30")
    a("v_mov_b32 v13, v12")
    a.nop(2)
    a("v_permlane32_swap_b32 v12, v13")
    a.nop(1)
    a("v_max_f32 v12, v12, v13")
    for t in range(8): a(f"v_sub_f32 v{16+2*t}, v{16+2*t}, v12")
    for t in range(8): a(f"v_exp_f32 v{16+2*t}, v{16+2*t}")
    a.nop(1)
    a("v_mul_f32 v64, v16, v17")
    for t in range(1, 8): a(f"v_fmac_f32 v64, v{16+2*t}, v{17+2*t}")
    for k in range(4):
        a(f"v_mul_f32 v{65+k}, v16, v{32+k}")
        for t in range(1, 8): a(f"v_fmac_f32 v{65+k}, v{16+2*t}, v{32+4*t+k}")
    for k in range(5): a(f"v_mov_b32 v{70+k}, v{64+k}")
    a.nop(2)
    for k in range(5): a(f"v_permlane32_swap_b32 v{64+k}, v{70+k}")
    a.nop(1)
    for k in range(5): a(f"v_add_f32 v{64+k}, v{64+k}, v{70+k}")
    a("v_rcp_f32 v64, v64\ns_nop 0")
    for k in range(4): a(f"v_mul_f32 v{65+k}, v64, v{65+k}")
    a("v_cvt_pk_bf16_f32 v66, v65, v66\nv_cvt_pk_bf16_f32 v67, v67, v68")
    a("v_and_b32 v13, 31, v0\nv_lshlrev_b32 v13, 3, v13")
    a(f"ds_write_b64 v13, v[66:67] offset:{OL}")
    a("s_waitcnt lgkmcnt(0)")
    lds_inc(a, F_O, 1, 2)
    stamp(a, 9)
    a.lab("L_end")
    a("s_endpgm")
    out += a.L
    out.append(f""".section .rodata,"a"
.p2align 6
.amdhsa_kernel {KN}
  .amdhsa_next_free_vgpr 168
  .amdhsa_next_free_sgpr 102
  .amdhsa_accum_offset 168
  .amdhsa_group_segment_fixed_size 0
  .amdhsa_kernarg_size 104
  .amdhsa_user_sgpr_count 2
  .amdhsa_user_sgpr_kernarg_segment_ptr 1
  .amdhsa_system_sgpr_workgroup_id_x 1
.end_amdhsa_kernel""")
    return "\n".join(out) + "\n"

if __name__ == "__main__":
    if len(sys.argv) > 2 and sys.argv[2] == "stamps": STAMPS = True
    if len(sys.argv) > 2 and sys.argv[2] == "diag": DIAG = True
    open(sys.argv[1], "w").write(gen())
```

```python
import sys

KN = "gated_mix__gqa_block_cached__swiglu_ffn__decode_kernel"
STAMPS = False

QP = 0x0
OP = 0x10000
ST = 0x90000
FP = 0xA0000
NPROD = 208
STAMPO = 0x8000000
F_INIT, F_Q, F_GO, F_CB0, F_CB1, F_GU, F_O, F_RED, F_GATE = 0, 4, 8, 12, 16, 20, 24, 28, 32
QL = 0x100
STL = 0x500
OB = 0x800
GUL = 0x2800
HL = 0x3800
OL = 0x3A00
REDL = 0x3B00
GATEL = 0x3D00
LDS_BYTES = 0x4000
SPIN_LIMIT = 400000

class A:
    def __init__(s): s.L = []; s.n = 0
    def __call__(s, t):
        for l in t.strip("\n").split("\n"): s.L.append("    " + l.strip())
    def lab(s, l): s.L.append(l + ":")
    def new(s, p="L"):
        s.n += 1; return f"{p}_{s.n}"
    def nop(s, k):
        while k > 0:
            c = min(k, 16); s(f"s_nop {c-1}"); k -= c

def vr(b, n=1): return f"v{b}" if n == 1 else f"v[{b}:{b+n-1}]"

def srd(a, q, lo, nbytes):
    a(f"s_mov_b32 s{q}, s{lo}\ns_mov_b32 s{q+1}, s{lo+1}\ns_mov_b32 s{q+2}, {nbytes}\ns_mov_b32 s{q+3}, 0x20000")

P_X, P_K, P_V, P_WQ, P_WO, P_BX, P_WG, P_WU = 36, 38, 40, 42, 44, 46, 48, 50
P_WD, P_GW, P_OUT, P_DBG, P_WS = 52, 54, 56, 58, 60
SX, SWS, SA, SB, SC, SDBG, SOUT = 8, 12, 16, 20, 24, 28, 32
def S(q): return f"s[{q}:{q+3}]"
S_WAVE = 3; S_U = 4; S_T = 5; S_TMP = 6; S_TMP2 = 7
S_ROLE = 62
S_RIDX = 63
S_PROD = 64
S_CNT = 65
S_B0 = 66; S_B1 = 67; S_B2 = 68; S_B3 = 69
S_EX = 70
S_EX2 = 72
S_SELLO = 74; S_SELHI = 75
S_KVH = 76; S_SPL = 77
S_C1 = 78; S_C2 = 79
S_ST0 = 80

DIAG = False
DIAG2 = False
def stamp(a, idx):
    if DIAG:
        a(f"s_memrealtime s[{S_ST0+2*0}:{S_ST0+1}]")
        a("s_waitcnt lgkmcnt(0)")
        if idx == 0: a(f"s_not_b32 s{S_ST0}, s{S_ST0}")
        a(f"v_mov_b32 v14, s{S_ST0}")
        a("v_mov_b32 v15, 0")
        a(f"s_mov_b64 s[{S_ST0+4}:{S_ST0+5}], exec")
        a("s_mov_b64 exec, 1")
        a(f"buffer_atomic_umax v14, v15, {S(SDBG)}, 0 offen offset:{4*idx}")
        a(f"s_mov_b64 exec, s[{S_ST0+4}:{S_ST0+5}]")
    elif STAMPS or DIAG2:
        a(f"s_memrealtime s[{S_ST0+2*0}:{S_ST0+1}]")
        a("s_waitcnt lgkmcnt(0)")
        a(f"v_mov_b32 v14, s{S_ST0}")
        a(f"s_lshl_b32 s{S_ST0+2}, s2, 6")
        a(f"s_add_u32 s{S_ST0+2}, s{S_ST0+2}, {STAMPO + 4*idx}")
        a("v_mov_b32 v15, 0")
        a(f"s_mov_b64 s[{S_ST0+4}:{S_ST0+5}], exec")
        a("s_mov_b64 exec, 1")
        a(f"buffer_store_dword v14, v15, {S(SWS)}, s{S_ST0+2} offen sc1")
        a(f"s_mov_b64 exec, s[{S_ST0+4}:{S_ST0+5}]")

def wait_lds(a, flag, target, vz, vt):
    l = a.new("W"); d = a.new("WD")
    a(f"s_mov_b32 s{S_CNT}, 0")
    a.lab(l)
    a(f"ds_read_b32 v{vt}, v{vz} offset:{flag}")
    a("s_waitcnt lgkmcnt(0)")
    a(f"v_readfirstlane_b32 s{S_TMP}, v{vt}")
    a(f"s_cmp_ge_u32 s{S_TMP}, {target}")
    a(f"s_cbranch_scc1 {d}")
    a(f"s_add_u32 s{S_CNT}, s{S_CNT}, 1")
    a(f"s_cmp_gt_u32 s{S_CNT}, {SPIN_LIMIT}")
    a(f"s_cbranch_scc1 {d}")
    a("s_sleep 1")
    a(f"s_branch {l}")
    a.lab(d)

def lds_inc(a, flag, vz, vone):
    a(f"s_mov_b64 s[{S_EX}:{S_EX+1}], exec\ns_mov_b64 exec, 1")
    a(f"ds_add_u32 v{vz}, v{vone} offset:{flag}")
    a(f"s_mov_b64 exec, s[{S_EX}:{S_EX+1}]")

def umax_chain(a, dst, regs):
    regs = list(regs)
    if len(regs) == 1:
        a(f"v_mov_b32 v{dst}, v{regs[0]}"); return
    if len(regs) == 2:
        a(f"v_max_u32 v{dst}, v{regs[0]}, v{regs[1]}"); return
    a(f"v_max3_u32 v{dst}, v{regs[0]}, v{regs[1]}, v{regs[2]}")
    i = 3
    while i < len(regs):
        if i + 1 < len(regs):
            a(f"v_max3_u32 v{dst}, v{dst}, v{regs[i]}, v{regs[i+1]}"); i += 2
        else:
            a(f"v_max_u32 v{dst}, v{dst}, v{regs[i]}"); i += 1

def poll_loop(a, emit_loads, regs, vt, sleep=2):
    l = a.new("P"); d = a.new("PD")
    a(f"s_mov_b32 s{S_CNT}, 0")
    a.lab(l)
    emit_loads()
    a("s_waitcnt vmcnt(0)")
    umax_chain(a, vt, regs)
    a(f"v_cmp_eq_u32 vcc, -1, v{vt}")
    a(f"s_cbranch_vccz {d}")
    a(f"s_add_u32 s{S_CNT}, s{S_CNT}, 1")
    a(f"s_cmp_gt_u32 s{S_CNT}, {SPIN_LIMIT}")
    a(f"s_cbranch_scc1 {d}")
    a(f"s_sleep {sleep}")
    a(f"s_branch {l}")
    a.lab(d)

def narrow_lane_offsets(a, stride, vO1, vO2, t1, t2):
    a(f"v_lshrrev_b32 v{t1}, 4, v0")
    a(f"v_bfe_u32 v{t2}, v0, 2, 2")
    a(f"v_lshlrev_b32 v{vO1}, 5, v{t2}")
    a(f"v_lshl_add_u32 v{vO1}, v{t1}, 3, v{vO1}")
    a(f"v_lshlrev_b32 v{vO2}, 3, v{t2}")
    a(f"v_lshl_add_u32 v{vO2}, v{t1}, 1, v{vO2}")
    a(f"s_mov_b32 s{S_TMP}, {stride}")
    a(f"v_mul_lo_u32 v{vO1}, v{vO1}, s{S_TMP}")
    a(f"v_mul_lo_u32 v{vO2}, v{vO2}, s{S_TMP}")
    a(f"v_and_b32 v{t1}, 3, v0")
    a(f"v_lshl_add_u32 v{vO1}, v{t1}, 4, v{vO1}")
    a(f"v_lshl_add_u32 v{vO2}, v{t1}, 4, v{vO2}")

def narrow_x_loads(a, XA, srow0, t1, t2, t3):
    a(f"v_lshrrev_b32 v{t1}, 4, v0")
    a(f"v_bfe_u32 v{t2}, v0, 2, 2")
    a(f"v_and_b32 v{t3}, 1, v0")
    a(f"v_mul_u32_u24 v{t3}, 1152, v{t3}")
    a(f"v_lshl_add_u32 v{XA+9}, v{t2}, 6, v{t3}")
    a(f"v_lshl_add_u32 v{XA+9}, v{t1}, 4, v{XA+9}")
    a(f"v_lshl_add_u32 v{t3}, v{t2}, 4, v{t3}")
    a(f"v_lshl_add_u32 v{t3}, v{t1}, 2, v{t3}")
    a(f"buffer_load_dwordx4 {vr(XA,4)}, v{XA+9}, {S(SX)}, s{srow0} offen")
    a(f"buffer_load_dwordx4 {vr(XA+4,4)}, v{XA+9}, {S(SX)}, s{srow0} offen offset:256")
    a(f"buffer_load_dword v{XA+8}, v{t3}, {S(SX)}, s{srow0} offen offset:512")

def narrow_loads(a, srdq, stride, sbase, W, vO1, vO2):
    for J in range(2):
        for j in range(8):
            r = W + (J*8 + j)*4
            a(f"s_add_u32 s{S_TMP}, s{sbase}, {(128*J + j)*stride}")
            a(f"buffer_load_dwordx4 {vr(r,4)}, v{vO1}, {S(srdq)}, s{S_TMP} offen nt")
    for j in range(2):
        r = W + 64 + j*4
        a(f"s_add_u32 s{S_TMP}, s{sbase}, {(256 + j)*stride}")
        a(f"buffer_load_dwordx4 {vr(r,4)}, v{vO2}, {S(srdq)}, s{S_TMP} offen nt")

def narrow_compute(a, W, XA, ACC, BT, vL, t1):
    for k in (9, 10, 11):
        a(f"v_mov_b32 v{XA+k}, 0")
        a(f"v_mov_b32 v{BT+k}, 0")
    a(f"v_lshrrev_b32 v{BT+1}, 4, v0")
    a(f"v_bfe_u32 v{BT}, v0, 2, 2")
    a(f"v_cmp_eq_u32 s[{S_EX2}:{S_EX2+1}], v{BT+1}, v{BT}")
    pend = None
    for u in range(4):
        acc = [ACC + (u & 1)*8, ACC + (u & 1)*8 + 4]
        for p in range(2):
            sel = S_SELHI if p else S_SELLO
            for J in range(2):
                for t in range(4):
                    lo = W + (J*8 + 2*t)*4 + u; hi = W + (J*8 + 2*t + 1)*4 + u
                    a(f"v_perm_b32 v{BT + J*4 + t}, v{hi}, v{lo}, s{sel}")
            a(f"v_perm_b32 v{BT+8}, v{W+68+u}, v{W+64+u}, s{sel}")
            a.nop(2)
            a(f"v_mfma_f32_16x16x32_bf16 {vr(acc[p],4)}, {vr(XA,4)}, {vr(BT,4)}, 0")
            a(f"v_mfma_f32_16x16x32_bf16 {vr(acc[p],4)}, {vr(XA+4,4)}, {vr(BT+4,4)}, {vr(acc[p],4)}")
            a(f"v_mfma_f32_16x16x32_bf16 {vr(acc[p],4)}, {vr(XA+8,4)}, {vr(BT+8,4)}, {vr(acc[p],4)}")
            if p == 0 and pend is not None:
                pu, pacc = pend
                a(f"s_mov_b64 exec, s[{S_EX2}:{S_EX2+1}]")
                for b in range(2):
                    a(f"ds_write2_b32 v{vL}, v{pacc[0]+b}, v{pacc[1]+b} offset0:{b*32+2*pu} offset1:{b*32+2*pu+1}")
                a("s_mov_b64 exec, -1")
        pend = (u, acc)
    a.nop(8)
    pu, pacc = pend
    a(f"s_mov_b64 exec, s[{S_EX2}:{S_EX2+1}]")
    for b in range(2):
        a(f"ds_write2_b32 v{vL}, v{pacc[0]+b}, v{pacc[1]+b} offset0:{b*32+2*pu} offset1:{b*32+2*pu+1}")
    a("s_mov_b64 exec, -1")

def narrow_lds_addr(a, vL, base, t1):
    a(f"v_bfe_u32 v{t1}, v0, 2, 2")
    a(f"v_lshlrev_b32 v{vL}, 8, v{t1}")
    a(f"v_and_b32 v{t1}, 3, v0")
    a(f"v_lshl_add_u32 v{vL}, v{t1}, 5, v{vL}")
    a(f"v_add_u32 v{vL}, {base}, v{vL}")

def wide_loads(a, srdq, sbase, W, vO):
    for j in range(8):
        a(f"s_add_u32 s{S_TMP}, s{sbase}, {j*1152}")
        a(f"buffer_load_dwordx4 {vr(W+4*j,4)}, v{vO}, {S(srdq)}, s{S_TMP} offen nt")

def wide_compute(a, units, ACC, BT, nk=8):
    for e in range(8):
        u, p = e >> 1, e & 1
        sel = S_SELHI if p else S_SELLO
        for ui, (W, Aop) in enumerate(units):
            bt = BT + ((e*len(units) + ui) & 1)*4
            for t in range(nk//2):
                lo = W + (2*t)*4 + u; hi = W + (2*t+1)*4 + u
                a(f"v_perm_b32 v{bt+t}, v{hi}, v{lo}, s{sel}")
            a.nop(2)
            c = "0" if ui == 0 else vr(ACC+4*e, 4)
            if nk == 8:
                a(f"v_mfma_f32_16x16x32_bf16 {vr(ACC+4*e,4)}, {vr(Aop,4)}, {vr(bt,4)}, {c}")
            else:
                a(f"v_mfma_f32_16x16x16_bf16 {vr(ACC+4*e,4)}, {vr(Aop,2)}, {vr(bt,2)}, {c}")

def wide_publish(a, ACC, PK, vFO, cb, nlanes_mask):
    for b in range(2):
        for e in range(8):
            a(f"v_min_u32 v{PK+8*b+e}, s{S_C1}, v{ACC+4*e+b}")
    a(f"s_mov_b64 exec, {nlanes_mask}")
    for b in range(2):
        a(f"s_add_u32 s{S_TMP}, s{S_B3}, {(b*18 + 4*cb)*NPROD*128}")
        a(f"buffer_store_dwordx4 {vr(PK+8*b,4)}, v{vFO}, {S(SWS)}, s{S_TMP} offen sc1")
        a(f"buffer_store_dwordx4 {vr(PK+8*b+4,4)}, v{vFO}, {S(SWS)}, s{S_TMP} offen offset:16 sc1")
    a("s_mov_b64 exec, -1")

def rho_sum(a, ACC, T):
    regs = [ACC+4*e+b for e in range(8) for b in range(2)]
    for i, r in enumerate(regs): a(f"v_mov_b32 v{T+i}, v{r}")
    a.nop(2)
    for i, r in enumerate(regs): a(f"v_permlane16_swap_b32 v{r}, v{T+i}")
    a.nop(2)
    for i, r in enumerate(regs): a(f"v_add_f32_dpp v{r}, v{T+i}, v{r} row_ror:8 row_mask:0xf bank_mask:0xf")

def gen():
    a = A()
    hdr = open("gated_mix__gqa_block_cached__swiglu_ffn__decode.s.ref").read().split("\n")
    pre = [l for l in hdr if l.startswith(";") and "@launch" not in l]
    out = pre + [f"; @launch grid=(256,1,1) block=(768,1,1) lds={LDS_BYTES}",
                 '.amdgcn_target "amdgcn-amd-amdhsa--gfx950"', ".text", f".globl {KN}", ".p2align 8",
                 f".type {KN},@function", f"{KN}:"]
    a("s_cmp_ge_u32 s2, 256\ns_cbranch_scc1 L_end")
    a("s_load_dwordx16 s[36:51], s[0:1], 0\ns_load_dwordx8 s[52:59], s[0:1], 64\ns_load_dwordx2 s[60:61], s[0:1], 96")
    a("v_lshrrev_b32 v1, 6, v0\nv_and_b32 v0, 63, v0\ns_nop 0")
    a(f"v_readfirstlane_b32 s{S_WAVE}, v1")
    a("v_mov_b32 v1, 0\nv_mov_b32 v2, 1")
    a(f"s_lshr_b32 s{S_U}, s2, 4\ns_add_u32 s{S_T}, s2, s{S_U}\ns_and_b32 s{S_T}, s{S_T}, 15")
    a(f"s_mov_b32 s{S_KVH}, s{S_U}\ns_and_b32 s{S_SPL}, s2, 15")
    a(f"s_mov_b32 s{S_SELLO}, 0x05040100\ns_mov_b32 s{S_SELHI}, 0x07060302\ns_mov_b32 s{S_C1}, 0xfffffffe")
    l1 = a.new(); l2 = a.new(); l3 = a.new()
    a(f"s_cmp_lt_u32 s{S_T}, 9\ns_cbranch_scc0 {l1}")
    a(f"s_mov_b32 s{S_ROLE}, 0\ns_mul_i32 s{S_RIDX}, s{S_U}, 9\ns_add_u32 s{S_RIDX}, s{S_RIDX}, s{S_T}\ns_add_u32 s{S_PROD}, s{S_RIDX}, 64\ns_branch {l3}")
    a.lab(l1)
    a(f"s_cmp_lt_u32 s{S_T}, 13\ns_cbranch_scc0 {l2}")
    a(f"s_mov_b32 s{S_ROLE}, 1\ns_lshl_b32 s{S_RIDX}, s{S_U}, 2\ns_add_u32 s{S_RIDX}, s{S_RIDX}, s{S_T}\ns_sub_u32 s{S_RIDX}, s{S_RIDX}, 9\ns_mov_b32 s{S_PROD}, s{S_RIDX}\ns_branch {l3}")
    a.lab(l2)
    a(f"s_mul_i32 s{S_RIDX}, s{S_U}, 3\ns_add_u32 s{S_RIDX}, s{S_RIDX}, s{S_T}\ns_sub_u32 s{S_RIDX}, s{S_RIDX}, 13\ns_mov_b32 s{S_PROD}, 0")
    a(f"s_cmp_lt_u32 s{S_RIDX}, 36\ns_cselect_b32 s{S_ROLE}, 2, 3")
    a.lab(l3)
    a(f"s_lshl_b32 s{S_B3}, s{S_PROD}, 7\ns_add_u32 s{S_B3}, s{S_B3}, {FP}")
    a("s_waitcnt lgkmcnt(0)")
    srd(a, SX, P_X, 2304)
    srd(a, SWS, P_WS, 0x10000000)
    srd(a, SDBG, P_DBG, 256)
    a(f"s_cmp_ge_u32 s{S_WAVE}, 4\ns_cbranch_scc1 L_att")
    a(f"s_cmp_eq_u32 s{S_WAVE}, 0\ns_cbranch_scc1 L_x0")
    a(f"s_cmp_eq_u32 s{S_WAVE}, 1\ns_cbranch_scc1 L_x1")
    a("s_barrier")
    a(f"s_cmp_eq_u32 s{S_WAVE}, 3\ns_cbranch_scc0 L_aux2")
    a(f"s_cmp_eq_u32 s{S_ROLE}, 2\ns_cbranch_scc0 L_aux2")
    srd(a, SA, P_GW, 1152)
    a("v_and_b32 v3, 31, v0\nv_mul_u32_u24 v3, 36, v3\nv_lshrrev_b32 v4, 5, v0\nv_mul_u32_u24 v4, 1152, v4\nv_add_u32 v4, v4, v3")
    for i in range(9):
        a(f"buffer_load_dword v{16+i}, v4, {S(SX)}, 0 offen offset:{4*i}")
        a(f"buffer_load_dword v{32+i}, v3, {S(SA)}, 0 offen offset:{4*i}")
    a("v_mov_b32 v5, 0\ns_waitcnt vmcnt(0)")
    for i in range(9):
        a(f"v_lshlrev_b32 v6, 16, v{16+i}\nv_and_b32 v7, 0xffff0000, v{16+i}\nv_lshlrev_b32 v8, 16, v{32+i}\nv_and_b32 v9, 0xffff0000, v{32+i}")
        a("v_mul_f32 v6, v6, v8\nv_mul_f32 v7, v7, v9\nv_cvt_pk_bf16_f32 v6, v6, v7")
        a("v_lshlrev_b32 v7, 16, v6\nv_and_b32 v6, 0xffff0000, v6\nv_add_f32 v5, v5, v7\nv_add_f32 v5, v5, v6")
    for k in (1, 2, 4, 8):
        a.nop(2)
        a(f"v_add_f32_dpp v5, v5, v5 row_ror:{k} row_mask:0xf bank_mask:0xf")
    a("v_mov_b32 v6, v5")
    a.nop(2)
    a("v_permlane16_swap_b32 v5, v6")
    a.nop(1)
    a("v_add_f32 v5, v5, v6")
    a("v_cvt_pk_bf16_f32 v5, v5, v5\nv_and_b32 v5, 0xffff0000, v5")
    a("v_mul_f32 v6, 0xbfb8aa3b, v5\nv_exp_f32 v6, v6\ns_nop 0\nv_add_f32 v6, 1.0, v6\nv_rcp_f32 v6, v6\ns_nop 0")
    a("v_cvt_pk_bf16_f32 v6, v6, v6\nv_and_b32 v6, 0xffff0000, v6")
    a("v_lshrrev_b32 v7, 5, v0\nv_lshlrev_b32 v7, 2, v7")
    a(f"ds_write_b32 v7, v6 offset:{GATEL}")
    a("s_waitcnt lgkmcnt(0)")
    lds_inc(a, F_GATE, 1, 2)
    a("s_branch L_aux2")

    a.lab("L_x0")
    W = 16; XA = 140; ACC = 88; BT = 104; vO1, vO2, vL = 4, 5, 6
    srd(a, SA, P_WQ, 576*8192)
    a(f"s_and_b32 s{S_B0}, s2, 1\ns_mul_i32 s{S_B1}, s{S_B0}, 576")
    narrow_x_loads(a, XA, S_B1, 7, 8, 9)
    narrow_lane_offsets(a, 8192, vO1, vO2, 7, 8)
    a(f"s_mul_i32 s{S_B2}, s{S_B0}, {288*8192}\ns_lshr_b32 s{S_TMP}, s2, 1\ns_lshl_b32 s{S_TMP}, s{S_TMP}, 6\ns_add_u32 s{S_B2}, s{S_B2}, s{S_TMP}")
    narrow_loads(a, SA, 8192, S_B2, W, vO1, vO2)
    a("s_barrier")
    narrow_lds_addr(a, vL, GUL, 7)
    a("s_waitcnt vmcnt(0)")
    narrow_compute(a, W, XA, ACC, BT, vL, 7)
    a(f"v_lshlrev_b32 v7, 2, v0\nv_add_u32 v7, {GUL}, v7")
    a("s_waitcnt lgkmcnt(0)")
    a("ds_read2st64_b32 v[8:9], v7 offset0:0 offset1:1\nds_read2st64_b32 v[10:11], v7 offset0:2 offset1:3")
    a("s_waitcnt lgkmcnt(0)")
    a("v_add_f32 v8, v8, v9\nv_add_f32 v10, v10, v11\nv_add_f32 v8, v8, v10")
    a(f"v_min_u32 v8, s{S_C1}, v8")
    a("v_lshrrev_b32 v9, 5, v0\nv_lshlrev_b32 v9, 14, v9\nv_and_b32 v10, 31, v0\nv_lshl_add_u32 v9, v10, 2, v9")
    wait_lds(a, F_INIT, 1, 1, 10)
    a(f"s_lshl_b32 s{S_B2}, s{S_B0}, 15\ns_lshr_b32 s{S_TMP}, s2, 1\ns_lshl_b32 s{S_TMP}, s{S_TMP}, 7\ns_add_u32 s{S_B2}, s{S_B2}, s{S_TMP}")
    a(f"buffer_store_dword v8, v9, {S(SWS)}, s{S_B2} offen offset:{QP} sc1")
    stamp(a, 1)
    a("s_branch L_aux2")

    a.lab("L_x1")
    stamp(a, 0)
    a("v_lshlrev_b32 v3, 2, v0")
    a("ds_write_b32 v3, v1")
    a("v_mov_b32 v16, -1\nv_mov_b32 v17, -1\nv_mov_b32 v18, -1\nv_mov_b32 v19, -1")
    a("v_lshrrev_b32 v9, 5, v0\nv_lshlrev_b32 v9, 14, v9\nv_and_b32 v10, 31, v0\nv_lshl_add_u32 v9, v10, 2, v9")
    a(f"s_and_b32 s{S_B0}, s2, 1\ns_lshl_b32 s{S_B2}, s{S_B0}, 15\ns_lshr_b32 s{S_TMP}, s2, 1\ns_lshl_b32 s{S_TMP}, s{S_TMP}, 7\ns_add_u32 s{S_B2}, s{S_B2}, s{S_TMP}")
    a(f"buffer_store_dword v16, v9, {S(SWS)}, s{S_B2} offen offset:{QP} sc1")
    a("v_lshrrev_b32 v9, 4, v0\nv_lshlrev_b32 v9, 13, v9\nv_and_b32 v10, 15, v0\nv_lshl_add_u32 v9, v10, 4, v9")
    a(f"s_lshl_b32 s{S_B2}, s{S_KVH}, 15\ns_lshl_b32 s{S_TMP}, s{S_SPL}, 9\ns_add_u32 s{S_B2}, s{S_B2}, s{S_TMP}\ns_add_u32 s{S_B2}, s{S_B2}, {OP}")
    a(f"buffer_store_dwordx4 v[16:19], v9, {S(SWS)}, s{S_B2} offen sc1")
    a(f"buffer_store_dwordx4 v[16:19], v9, {S(SWS)}, s{S_B2} offen offset:256 sc1")
    a("v_lshlrev_b32 v9, 8, v0")
    a(f"s_lshl_b32 s{S_B2}, s{S_KVH}, 9\ns_lshl_b32 s{S_TMP}, s{S_SPL}, 4\ns_add_u32 s{S_B2}, s{S_B2}, s{S_TMP}\ns_add_u32 s{S_B2}, s{S_B2}, {ST}")
    a("s_mov_b64 exec, 3")
    a(f"buffer_store_dwordx4 v[16:19], v9, {S(SWS)}, s{S_B2} offen sc1")
    a("s_mov_b64 exec, -1")
    lskip = a.new()
    a(f"s_cmp_gt_u32 s{S_ROLE}, 1\ns_cbranch_scc1 {lskip}")
    a(f"v_lshrrev_b32 v9, 3, v0\ns_mov_b32 s{S_TMP}, {NPROD*128}\nv_mul_lo_u32 v9, v9, s{S_TMP}\nv_and_b32 v10, 7, v0\nv_lshl_add_u32 v9, v10, 4, v9")
    for i in range(5):
        if i == 4: a("s_mov_b32 exec_lo, -1\ns_mov_b32 exec_hi, 0")
        a(f"s_add_u32 s{S_TMP}, s{S_B3}, {i*8*NPROD*128}")
        a(f"buffer_store_dwordx4 v[16:19], v9, {S(SWS)}, s{S_TMP} offen sc1")
    a("s_mov_b64 exec, -1")
    a.lab(lskip)
    a("s_waitcnt lgkmcnt(0)")
    a("s_barrier")
    a("s_waitcnt vmcnt(0)")
    lds_inc(a, F_INIT, 1, 2)
    a("s_mov_b64 exec, 1")
    if DIAG:
        a(f"s_and_b32 s{S_TMP}, s2, 31\ns_lshl_b32 s{S_TMP}, 1, s{S_TMP}\nv_mov_b32 v9, s{S_TMP}\ns_lshr_b32 s{S_TMP}, s2, 5\ns_lshl_b32 s{S_TMP}, s{S_TMP}, 2")
        a(f"buffer_atomic_or v9, v1, {S(SDBG)}, s{S_TMP} offen offset:128")
    else:
        a(f"buffer_store_byte v2, v1, {S(SDBG)}, s2 offen sc1")
    a("s_mov_b64 exec, -1")
    l = a.new("G"); d = a.new("GD")
    a(f"s_mov_b32 s{S_CNT}, 0\ns_lshl_b32 s{S_B2}, s{S_KVH}, 4\ns_mov_b32 s{S_TMP2}, 0x01010101")
    a("s_sleep 48")
    a.lab(l)
    if DIAG:
        a(f"s_lshl_b32 s{S_B2}, s{S_KVH}, 1\ns_mov_b32 s{S_TMP2}, 0xffff")
        a(f"buffer_load_ushort v16, v1, {S(SDBG)}, s{S_B2} offen offset:128 sc1")
        a("s_waitcnt vmcnt(0)")
    else:
        a(f"buffer_load_dwordx4 v[16:19], v1, {S(SDBG)}, s{S_B2} offen sc1")
        a("s_waitcnt vmcnt(0)")
        a("v_and_b32 v16, v16, v17\nv_and_b32 v18, v18, v19\nv_and_b32 v16, v16, v18\ns_nop 0")
    a(f"v_readfirstlane_b32 s{S_TMP}, v16")
    a(f"s_cmp_eq_u32 s{S_TMP}, s{S_TMP2}\ns_cbranch_scc1 {d}")
    a(f"s_add_u32 s{S_CNT}, s{S_CNT}, 1\ns_cmp_gt_u32 s{S_CNT}, {SPIN_LIMIT}\ns_cbranch_scc1 {d}")
    a(f"s_sleep 16\ns_branch {l}")
    a.lab(d)
    stamp(a, 2)
    a("v_lshlrev_b32 v9, 4, v0")
    a(f"s_lshl_b32 s{S_B2}, s{S_KVH}, 10\ns_add_u32 s{S_B2}, s{S_B2}, {QP}")
    def ld():
        for ks in range(2):
            for b in range(2):
                a(f"s_add_u32 s{S_TMP}, s{S_B2}, {ks*32768 + b*16384}")
                a(f"buffer_load_dwordx4 {vr(16+(ks*2+b)*4,4)}, v9, {S(SWS)}, s{S_TMP} offen sc1")
    poll_loop(a, ld, range(16, 32), 10, sleep=4)
    for b in range(2):
        for i in range(4):
            a(f"v_add_f32 v{16+b*4+i}, v{16+b*4+i}, v{24+b*4+i}")
        a(f"v_cvt_pk_bf16_f32 v{32+2*b}, v{16+b*4}, v{17+b*4}\nv_cvt_pk_bf16_f32 v{33+2*b}, v{18+b*4}, v{19+b*4}")
    a("v_lshlrev_b32 v9, 3, v0")
    a(f"ds_write_b64 v9, v[32:33] offset:{QL}\nds_write_b64 v9, v[34:35] offset:{QL+512}")
    a("s_waitcnt lgkmcnt(0)")
    lds_inc(a, F_Q, 1, 2)
    stamp(a, 3)

    a.lab("L_aux2")
    a(f"s_cmp_eq_u32 s{S_ROLE}, 0\ns_cbranch_scc1 L_ffn")
    a(f"s_cmp_eq_u32 s{S_ROLE}, 1\ns_cbranch_scc1 L_wo")
    a(f"s_cmp_eq_u32 s{S_ROLE}, 2\ns_cbranch_scc1 L_red")
    a("s_endpgm")

    a.lab("L_ffn")
    W = 16; WD = 88; WH = 120; XA = 136; ACC = 146+2; BT = 164-6
    ACC = 148; BT = 4
    vO1, vO2, vL, vOW, vFO = 164, 165, 166, 167, 164
    lm = a.new(); lm2 = a.new()
    a(f"s_and_b32 s{S_TMP}, s{S_WAVE}, 1\ns_cmp_eq_u32 s{S_TMP}, 0\ns_cbranch_scc0 {lm}")
    srd(a, SA, P_WG, 576*9216)
    a(f"s_branch {lm2}")
    a.lab(lm)
    srd(a, SA, P_WU, 576*9216)
    a.lab(lm2)
    srd(a, SB, P_WD, 4608*1152)
    a(f"s_lshr_b32 s{S_B0}, s{S_WAVE}, 1\ns_mul_i32 s{S_B1}, s{S_B0}, 576")
    narrow_x_loads(a, XA, S_B1, 7, 8, 9)
    narrow_lane_offsets(a, 9216, vO1, vO2, 7, 8)
    a(f"s_mul_i32 s{S_B2}, s{S_B0}, {288*9216}\ns_lshl_b32 s{S_TMP}, s{S_RIDX}, 6\ns_add_u32 s{S_B2}, s{S_B2}, s{S_TMP}")
    a(f"v_lshrrev_b32 v7, 4, v0\nv_mul_u32_u24 v{vOW}, {8*1152}, v7\nv_and_b32 v8, 15, v0\nv_lshl_add_u32 v{vOW}, v8, 4, v{vOW}")
    a(f"s_lshl_b32 s{S_TMP}, s{S_WAVE}, 10\ns_add_u32 s{S_B1}, s{S_TMP}, {GUL}")
    narrow_lds_addr(a, vL, 0, 7)
    a(f"v_add_u32 v{vL}, s{S_B1}, v{vL}")
    a(f"v_bfe_u32 v7, v0, 3, 1\nv_lshrrev_b32 v8, 4, v0\nv_lshlrev_b32 v7, 4, v7\nv_lshl_add_u32 v7, v8, 2, v7\nv_mul_u32_u24 v13, 1152, v7\nv_and_b32 v8, 7, v0\nv_lshl_add_u32 v13, v8, 4, v13")
    wait_lds(a, F_GO, 8, 1, 10)
    stamp(a, 4)
    narrow_loads(a, SA, 9216, S_B2, W, vO1, vO2)
    a(f"s_mul_i32 s{S_B0}, s{S_RIDX}, {32*1152}")
    a(f"s_lshl_b32 s{S_TMP}, s{S_WAVE}, 8\ns_add_u32 s{S_B2}, s{S_B0}, s{S_TMP}")
    wide_loads(a, SB, S_B2, WD, vOW)
    lnh = a.new(); lj = a.new()
    a(f"s_cmp_eq_u32 s{S_WAVE}, 0\ns_cbranch_scc0 {lnh}")
    for j in range(4):
        a(f"s_add_u32 s{S_TMP}, s{S_B0}, {j*1152 + 1024}")
        a(f"buffer_load_dwordx4 {vr(WH+4*j,4)}, v13, {S(SB)}, s{S_TMP} offen nt")
    a("s_waitcnt vmcnt(12)")
    a(f"s_branch {lj}")
    a.lab(lnh)
    a("s_waitcnt vmcnt(8)")
    a.lab(lj)
    narrow_compute(a, W, XA, ACC, BT, vL, 14)
    a(f"v_bfe_u32 v7, v0, 2, 2\ns_mov_b32 s{S_TMP}, {NPROD*128}\nv_mul_lo_u32 v{vFO}, v7, s{S_TMP}\nv_and_b32 v8, 3, v0\nv_lshl_add_u32 v{vFO}, v8, 5, v{vFO}")
    a("s_waitcnt lgkmcnt(0)")
    lds_inc(a, F_GU, 1, 2)
    wait_lds(a, F_GU, 4, 1, 10)
    a(f"v_lshlrev_b32 v7, 2, v0\nv_add_u32 v7, {GUL}, v7")
    for w in range(4):
        for r2 in range(2):
            a(f"ds_read2st64_b32 {vr(16+w*4+r2*2,2)}, v7 offset0:{w*4+r2*2} offset1:{w*4+r2*2+1}")
    a("s_waitcnt lgkmcnt(0)")
    for w in range(4):
        a(f"v_add_f32 v{16+4*w}, v{16+4*w}, v{17+4*w}\nv_add_f32 v{18+4*w}, v{18+4*w}, v{19+4*w}\nv_add_f32 v{16+4*w}, v{16+4*w}, v{18+4*w}")
    a("v_add_f32 v16, v16, v24\nv_add_f32 v20, v20, v28")
    a("v_cvt_pk_bf16_f32 v16, v16, v20\nv_and_b32 v20, 0xffff0000, v16\nv_lshlrev_b32 v16, 16, v16")
    a("v_mul_f32 v17, 0xbfb8aa3b, v16\nv_exp_f32 v17, v17\ns_nop 0\nv_add_f32 v17, 1.0, v17\nv_rcp_f32 v17, v17\ns_nop 0\nv_mul_f32 v17, v16, v17")
    a("v_cvt_pk_bf16_f32 v17, v17, v17\nv_and_b32 v17, 0xffff0000, v17\nv_mul_f32 v17, v17, v20\nv_cvt_pk_bf16_f32 v17, v17, v17")
    a(f"s_lshl_b32 s{S_TMP}, s{S_WAVE}, 7\ns_add_u32 s{S_TMP}, s{S_TMP}, {HL}")
    a(f"v_lshlrev_b32 v7, 1, v0\nv_add_u32 v7, s{S_TMP}, v7")
    a("ds_write_b16 v7, v17")
    a(f"v_and_b32 v8, 1, v0\nv_lshlrev_b32 v8, 6, v8\nv_add_u32 v8, s{S_TMP}, v8\nv_lshrrev_b32 v9, 4, v0\nv_lshl_add_u32 v10, v9, 4, v8")
    a("v_lshl_add_u32 v8, v9, 3, v8\nv_bfe_u32 v9, v0, 2, 1\nv_lshl_add_u32 v8, v9, 5, v8")
    a("s_waitcnt lgkmcnt(0)")
    a(f"ds_read_b128 {vr(XA,4)}, v10\nds_read_b64 {vr(XA+4,2)}, v8")
    ACCW = 16; PK = 48; BTW = 64; ACCH = 16; TT = 72
    a("s_waitcnt lgkmcnt(0)")
    lnh = a.new(); lj = a.new()
    a(f"s_cmp_eq_u32 s{S_WAVE}, 0\ns_cbranch_scc0 {lnh}")
    a("s_waitcnt vmcnt(4)")
    a(f"s_branch {lj}")
    a.lab(lnh)
    a("s_waitcnt vmcnt(0)")
    a.lab(lj)
    wide_compute(a, [(WD, XA)], ACCW, BTW)
    a.nop(8)
    a(f"s_mul_i32 s{S_TMP2}, s{S_WAVE}, {4*NPROD*128}\ns_add_u32 s{S_B3}, s{S_B3}, s{S_TMP2}")
    wide_publish(a, ACCW, PK, vFO, 0, "0xffff")
    lend = a.new()
    a(f"s_cmp_eq_u32 s{S_WAVE}, 0\ns_cbranch_scc0 {lend}")
    a("s_waitcnt vmcnt(4)")
    wide_compute(a, [(WH, XA+4)], ACCH, BTW, nk=4)
    a.nop(8)
    rho_sum(a, ACCH, 148)
    wide_publish(a, ACCH, 88, vFO, 4, "0xff")
    a.lab(lend)
    stamp(a, 5)
    a("s_endpgm")

    a.lab("L_wo")
    W0 = 16; W1 = 48; WH = 80; OA = 112; ACCW = 120; BTW = 4; PK = 152-0
    vOW, vFO, vOHh = 164, 165, 166
    srd(a, SB, P_WO, 4096*1152)
    a(f"v_lshrrev_b32 v7, 4, v0\nv_mul_u32_u24 v{vOW}, {8*1152}, v7\nv_and_b32 v8, 15, v0\nv_lshl_add_u32 v{vOW}, v8, 4, v{vOW}")
    a(f"v_bfe_u32 v7, v0, 2, 2\ns_mov_b32 s{S_TMP}, {NPROD*128}\nv_mul_lo_u32 v{vFO}, v7, s{S_TMP}\nv_and_b32 v8, 3, v0\nv_lshl_add_u32 v{vFO}, v8, 5, v{vFO}")
    a(f"v_bfe_u32 v7, v0, 3, 1\nv_lshrrev_b32 v8, 4, v0\nv_lshlrev_b32 v7, 5, v7\nv_lshl_add_u32 v7, v8, 3, v7\nv_mul_u32_u24 v{vOHh}, 1152, v7\nv_and_b32 v8, 7, v0\nv_lshl_add_u32 v{vOHh}, v8, 4, v{vOHh}")
    a(f"s_mul_i32 s{S_B0}, s{S_RIDX}, {64*1152}")
    a(f"s_lshl_b32 s{S_TMP}, s{S_WAVE}, 8\ns_add_u32 s{S_B2}, s{S_B0}, s{S_TMP}\ns_add_u32 s{S_B1}, s{S_B2}, {32*1152}")
    wait_lds(a, F_GO, 8, 1, 10)
    wide_loads(a, SB, S_B2, W0, vOW)
    wide_loads(a, SB, S_B1, W1, vOW)
    lnh = a.new()
    a(f"s_cmp_eq_u32 s{S_WAVE}, 0\ns_cbranch_scc0 {lnh}")
    a(f"s_add_u32 s{S_B1}, s{S_B0}, 1024")
    wide_loads(a, SB, S_B1, WH, vOHh)
    a.lab(lnh)
    a(f"v_and_b32 v8, 1, v0\nv_lshlrev_b32 v8, 7, v8\nv_lshrrev_b32 v9, 4, v0\nv_lshl_add_u32 v8, v9, 4, v8\nv_bfe_u32 v9, v0, 2, 1\nv_lshl_add_u32 v9, v9, 6, v8")
    wait_lds(a, F_O, 1, 1, 10)
    a(f"ds_read_b128 {vr(OA,4)}, v8 offset:{OL}\nds_read_b128 {vr(OA+4,4)}, v8 offset:{OL+64}\nds_read_b128 v[160:163], v9 offset:{OL}")
    a("s_waitcnt vmcnt(0) lgkmcnt(0)")
    wide_compute(a, [(W0, OA), (W1, OA+4)], ACCW, BTW)
    a.nop(8)
    a(f"s_mul_i32 s{S_TMP2}, s{S_WAVE}, {4*NPROD*128}\ns_add_u32 s{S_B3}, s{S_B3}, s{S_TMP2}")
    wide_publish(a, ACCW, 16, vFO, 0, "0xffff")
    lend = a.new()
    a(f"s_cmp_eq_u32 s{S_WAVE}, 0\ns_cbranch_scc0 {lend}")
    wide_compute(a, [(WH, 160)], ACCW, BTW)
    a.nop(8)
    rho_sum(a, ACCW, 48)
    wide_publish(a, ACCW, 64, vFO, 4, "0xff")
    a.lab(lend)
    stamp(a, 6)
    a("s_endpgm")

    a.lab("L_red")
    srd(a, SOUT, P_OUT, 2304)
    a("v_lshlrev_b32 v9, 4, v0")
    a(f"s_mul_i32 s{S_B2}, s{S_RIDX}, {NPROD*128}\ns_add_u32 s{S_B2}, s{S_B2}, {FP}")
    wait_lds(a, F_Q, 1, 1, 10)
    wait_lds(a, F_CB0, 4, 1, 10)
    wait_lds(a, F_CB1, 4, 1, 10)
    l = a.new("G"); d = a.new("GD")
    a(f"s_mov_b32 s{S_CNT}, 0\nv_lshlrev_b32 v11, 2, v0\ns_mov_b32 s{S_TMP2}, 0x01010101")
    a.lab(l)
    if DIAG:
        a(f"v_and_b32 v11, 28, v11\ns_mov_b32 s{S_TMP2}, -1")
        a(f"buffer_load_dword v16, v11, {S(SDBG)}, 0 offen offset:128 sc1")
    else:
        a(f"buffer_load_dword v16, v11, {S(SDBG)}, 0 offen sc1")
    a("s_waitcnt vmcnt(0)")
    a(f"v_cmp_ne_u32 vcc, s{S_TMP2}, v16")
    a(f"s_cbranch_vccz {d}")
    a(f"s_add_u32 s{S_CNT}, s{S_CNT}, 1\ns_cmp_gt_u32 s{S_CNT}, {SPIN_LIMIT}\ns_cbranch_scc1 {d}")
    a(f"s_sleep 16\ns_branch {l}")
    a.lab(d)
    lb = a.new(); lj = a.new()
    a(f"s_cmp_eq_u32 s{S_WAVE}, 0\ns_cbranch_scc0 {lb}")
    def mk(n):
        def ld():
            for i in range(n):
                a(f"s_add_u32 s{S_TMP}, s{S_B2}, {i*1024}")
                a(f"buffer_load_dwordx4 {vr(16+4*i,4)}, v9, {S(SWS)}, s{S_TMP} offen sc1")
        return ld
    poll_loop(a, mk(1), range(16, 20), 10, sleep=4)
    poll_loop(a, mk(8), range(16, 48), 10, sleep=2)
    for i in (6, 7):
        for k in range(4): a(f"v_add_f32 v{16+4*(i-6)+k}, v{16+4*(i-6)+k}, v{16+4*i+k}")
    a(f"s_branch {lj}")
    a.lab(lb)
    a(f"s_mul_i32 s{S_TMP}, s{S_WAVE}, {48*128}\ns_add_u32 s{S_B2}, s{S_B2}, s{S_TMP}\ns_add_u32 s{S_B2}, s{S_B2}, {(64-48)*128}")
    poll_loop(a, mk(1), range(16, 20), 10, sleep=4)
    poll_loop(a, mk(6), range(16, 40), 10, sleep=2)
    a.lab(lj)
    for k in range(4):
        a(f"v_add_f32 v{16+k}, v{16+k}, v{20+k}\nv_add_f32 v{24+k}, v{24+k}, v{28+k}\nv_add_f32 v{32+k}, v{32+k}, v{36+k}")
    for k in range(4):
        a(f"v_add_f32 v{16+k}, v{16+k}, v{24+k}")
    for k in range(4):
        a(f"v_add_f32 v{16+k}, v{16+k}, v{32+k}")
    a.nop(2)
    for k in range(4):
        a(f"v_add_f32_dpp v{16+k}, v{16+k}, v{16+k} row_ror:8 row_mask:0xf bank_mask:0xf")
    for sw in ("v_permlane16_swap_b32", "v_permlane32_swap_b32"):
        for k in range(4): a(f"v_mov_b32 v{20+k}, v{16+k}")
        a.nop(2)
        for k in range(4): a(f"{sw} v{16+k}, v{20+k}")
        a.nop(1)
        for k in range(4): a(f"v_add_f32 v{16+k}, v{16+k}, v{20+k}")
    a(f"s_lshl_b32 s{S_TMP}, s{S_WAVE}, 7\nv_add_u32 v9, s{S_TMP}, v9")
    a("s_mov_b64 exec, 0xff")
    a(f"ds_write_b128 v9, v[16:19] offset:{REDL}")
    a("s_mov_b64 exec, 1")
    a(f"ds_add_rtn_u32 v10, v1, v2 offset:{F_RED}")
    a("s_mov_b64 exec, -1")
    a("s_waitcnt lgkmcnt(0)")
    a(f"v_readfirstlane_b32 s{S_TMP}, v10")
    a(f"s_cmp_eq_u32 s{S_TMP}, 3\ns_cbranch_scc0 L_end")
    wait_lds(a, F_GATE, 1, 1, 10)
    a("v_lshlrev_b32 v9, 2, v0")
    a(f"ds_read_b32 v16, v9 offset:{REDL}\nds_read_b32 v17, v9 offset:{REDL+128}\nds_read_b32 v18, v9 offset:{REDL+256}\nds_read_b32 v19, v9 offset:{REDL+384}")
    a(f"s_cmp_ge_u32 s{S_RIDX}, 18\ns_cselect_b32 s{S_TMP}, 4, 0\nv_mov_b32 v11, s{S_TMP}")
    a(f"ds_read_b32 v20, v11 offset:{GATEL}")
    a("s_waitcnt lgkmcnt(0)")
    a("v_add_f32 v17, v17, v18\nv_add_f32 v17, v17, v19")
    a("v_sub_f32 v21, 1.0, v20")
    a("v_cvt_pk_bf16_f32 v16, v16, v17\nv_cvt_pk_bf16_f32 v21, v21, v21")
    a("v_and_b32 v17, 0xffff0000, v16\nv_lshlrev_b32 v16, 16, v16\nv_and_b32 v21, 0xffff0000, v21")
    a("v_mul_f32 v16, v20, v16\nv_mul_f32 v17, v21, v17\nv_cvt_pk_bf16_f32 v16, v16, v17")
    a("v_and_b32 v17, 0xffff0000, v16\nv_lshlrev_b32 v16, 16, v16\nv_add_f32 v16, v16, v17\nv_cvt_pk_bf16_f32 v16, v16, v16")
    a(f"v_lshlrev_b32 v9, 1, v0\ns_lshl_b32 s{S_TMP}, s{S_RIDX}, 6")
    a("s_mov_b32 exec_lo, -1\ns_mov_b32 exec_hi, 0")
    a(f"buffer_store_short v16, v9, {S(SOUT)}, s{S_TMP} offen")
    stamp(a, 7)
    if DIAG2:
        a("s_mov_b64 exec, -1")
        a(f"s_cmp_eq_u32 s{S_RIDX}, 0\ns_cbranch_scc0 L_end")
        for _ in range(6): a("s_sleep 127")
        a(f"s_sub_u32 s{S_C2}, s{S_ST0}, 20000")
        a(f"v_lshlrev_b32 v9, 6, v0\ns_mov_b32 s{S_B2}, {STAMPO}")
        for q in range(4):
            a(f"s_add_u32 s{S_TMP}, s{S_B2}, {q*4096}")
            for k in range(3):
                a(f"buffer_load_dwordx4 {vr(16+q*12+k*4,4)}, v9, {S(SWS)}, s{S_TMP} offen offset:{16*k} sc1")
        a("s_waitcnt vmcnt(0)")
        a(f"s_mov_b32 s{S_TMP}, 100000")
        for r in range(16, 64):
            a(f"v_subrev_u32 v{r}, s{S_C2}, v{r}")
            a(f"v_cmp_gt_u32 vcc, s{S_TMP}, v{r}")
            a("s_nop 1")
            a(f"v_sub_u32 v{r+48}, s{S_TMP}, v{r}")
            a(f"v_cndmask_b32 v{r}, 0, v{r}, vcc")
            a(f"v_cndmask_b32 v{r+48}, 0, v{r+48}, vcc")
        outs = [(16, i) for i in range(10)] + [(64, i) for i in (0, 2, 3, 8, 5, 7)]
        for o, (base, i) in enumerate(outs):
            a(f"v_max3_u32 v{120+o}, v{base+i}, v{base+12+i}, v{base+24+i}")
            a(f"v_max_u32 v{120+o}, v{120+o}, v{base+36+i}")
        for k in (1, 2, 4, 8):
            a.nop(2)
            for o in range(16): a(f"v_max_u32_dpp v{120+o}, v{120+o}, v{120+o} row_ror:{k} row_mask:0xf bank_mask:0xf")
        for sw in ("v_permlane16_swap_b32", "v_permlane32_swap_b32"):
            for o in range(16): a(f"v_mov_b32 v{140+o}, v{120+o}")
            a.nop(2)
            for o in range(16): a(f"{sw} v{120+o}, v{140+o}")
            a.nop(1)
            for o in range(16): a(f"v_max_u32 v{120+o}, v{120+o}, v{140+o}")
        for o in range(10, 16): a(f"v_sub_u32 v{120+o}, s{S_TMP}, v{120+o}")
        a("s_mov_b64 exec, 1")
        for k in range(4): a(f"buffer_store_dwordx4 {vr(120+4*k,4)}, v1, {S(SDBG)}, 0 offen offset:{16*k}")
    a("s_endpgm")

    a.lab("L_att")
    KR = 16; VRG = 80; QB = 144; S01 = 160
    srd(a, SA, P_K, 0x2000000)
    srd(a, SB, P_V, 0x2000000)
    a(f"s_sub_u32 s{S_B0}, s{S_WAVE}, 4\ns_and_b32 s{S_B1}, s{S_B0}, 1\ns_lshr_b32 s{S_B2}, s{S_B0}, 1")
    a(f"s_lshl_b32 s{S_TMP}, s{S_B1}, 4\ns_add_u32 s{S_TMP}, s{S_TMP}, s{S_KVH}\ns_lshl_b32 s{S_C2}, s{S_TMP}, 20")
    a(f"s_lshl_b32 s{S_TMP}, s{S_SPL}, 16\ns_add_u32 s{S_C2}, s{S_C2}, s{S_TMP}\ns_lshl_b32 s{S_TMP}, s{S_B2}, 14\ns_add_u32 s{S_C2}, s{S_C2}, s{S_TMP}")
    a("v_and_b32 v3, 15, v0\nv_lshrrev_b32 v4, 4, v0")
    a("v_lshlrev_b32 v5, 8, v3\nv_lshl_add_u32 v5, v4, 4, v5")
    a("v_lshlrev_b32 v6, 10, v4\nv_lshl_add_u32 v6, v3, 4, v6")
    a("s_barrier")
    for T in range(4):
        a(f"s_add_u32 s{S_TMP}, s{S_C2}, {T*4096}")
        for j in range(4):
            a(f"buffer_load_dwordx4 {vr(KR+(T*4+j)*4,4)}, v5, {S(SA)}, s{S_TMP} offen offset:{j*64} nt")
    for T in range(4):
        a(f"s_add_u32 s{S_TMP}, s{S_C2}, {T*4096}")
        for r in range(4):
            a(f"buffer_load_dwordx4 {vr(VRG+(T*4+r)*4,4)}, v6, {S(SB)}, s{S_TMP} offen offset:{r*256} nt")
    lds_inc(a, F_GO, 1, 2)
    a("v_and_b32 v7, 1, v0\nv_lshlrev_b32 v7, 4, v7\nv_mov_b32 v12, 0xffff\nv_lshlrev_b32 v12, v7, v12\nv_bfe_u32 v7, v0, 1, 2")
    for u in range(4):
        a(f"v_cmp_eq_u32 vcc, {u}, v7\ns_nop 1\nv_cndmask_b32 v{8+u}, 0, v12, vcc")
    a(f"v_bfe_u32 v7, v0, 3, 1\nv_lshlrev_b32 v7, 8, v7\nv_lshl_add_u32 v7, v4, 4, v7\ns_lshl_b32 s{S_TMP}, s{S_B1}, 9\nv_add_u32 v7, s{S_TMP}, v7")
    wait_lds(a, F_Q, 1, 1, 12)
    for j in range(4):
        a(f"ds_read_b128 {vr(QB+4*j,4)}, v7 offset:{QL+64*j}")
    a("s_waitcnt lgkmcnt(0)")
    SR = [S01, S01+4, KR, KR+4]
    for T in range(4):
        a(f"s_waitcnt vmcnt({16 + 12 - 4*T})")
        for j in range(4):
            c = "0" if j == 0 else vr(SR[T], 4)
            a(f"v_mfma_f32_16x16x32_bf16 {vr(SR[T],4)}, {vr(KR+(T*4+j)*4,4)}, {vr(QB+4*j,4)}, {c}")
    a.nop(8)
    sreg = [SR[T]+r for T in range(4) for r in range(4)]
    a(f"s_mov_b32 s{S_TMP}, 0x3db504f3\ns_mov_b32 s{S_TMP2}, 0x3fb8aa3b")
    for i in range(0, 16, 2):
        x, y = sreg[i], sreg[i+1]
        a(f"v_cvt_pk_bf16_f32 v12, v{x}, v{y}\nv_lshlrev_b32 v{x}, 16, v12\nv_and_b32 v{y}, 0xffff0000, v12")
        a(f"v_mul_f32 v{x}, s{S_TMP}, v{x}\nv_mul_f32 v{y}, s{S_TMP}, v{y}")
        a(f"v_cvt_pk_bf16_f32 v12, v{x}, v{y}\nv_lshlrev_b32 v{x}, 16, v12\nv_and_b32 v{y}, 0xffff0000, v12")
    a(f"v_max3_f32 v12, v{sreg[0]}, v{sreg[1]}, v{sreg[2]}")
    for i in range(3, 15, 2):
        a(f"v_max3_f32 v12, v12, v{sreg[i]}, v{sreg[i+1]}")
    a(f"v_max_f32 v12, v12, v{sreg[15]}")
    for sw in ("v_permlane16_swap_b32", "v_permlane32_swap_b32"):
        a("v_mov_b32 v13, v12")
        a.nop(2)
        a(f"{sw} v12, v13")
        a.nop(1)
        a("v_max_f32 v12, v12, v13")
    a(f"v_mul_f32 v12, s{S_TMP2}, v12")
    for r in sreg:
        a(f"v_fma_f32 v{r}, v{r}, s{S_TMP2}, -v12")
    for r in sreg:
        a(f"v_exp_f32 v{r}, v{r}")
    a.nop(1)
    a(f"v_add_f32 v13, v{sreg[0]}, v{sreg[1]}")
    for r in sreg[2:]:
        a(f"v_add_f32 v13, v13, v{r}")
    AP = [24+4*i for i in range(14)] + [QB, QB+4]
    for i, r in enumerate(sreg):
        a(f"v_cvt_pk_bf16_f32 v14, v{r}, v{r}")
        for u in range(4):
            a(f"v_and_b32 v{AP[i]+u}, v14, v{8+u}")
    for sw in ("v_permlane16_swap_b32", "v_permlane32_swap_b32"):
        a("v_mov_b32 v14, v13")
        a.nop(2)
        a(f"{sw} v13, v14")
        a.nop(1)
        a("v_add_f32 v13, v13, v14")
    a(f"v_bfe_u32 v14, v0, 3, 1\nv_lshlrev_b32 v14, 3, v14\ns_lshl_b32 s{S_TMP}, s{S_B0}, 4\nv_add_u32 v14, s{S_TMP}, v14")
    a("s_mov_b64 exec, 0x101")
    a(f"ds_write_b64 v14, v[12:13] offset:{STL}")
    a("s_mov_b64 exec, -1")
    OACC = [QB+8, QB+12]
    for i in range(16):
        a(f"s_waitcnt vmcnt({15-i})")
        c = "0" if i < 2 else vr(OACC[i & 1], 4)
        a(f"v_mfma_f32_16x16x32_bf16 {vr(OACC[i&1],4)}, {vr(AP[i],4)}, {vr(VRG+4*i,4)}, {c}")
    a(f"v_lshrrev_b32 v14, 5, v0\nv_lshlrev_b32 v14, 9, v14\nv_lshl_add_u32 v14, v3, 5, v14\nv_and_b32 v15, 1, v4\nv_lshl_add_u32 v14, v15, 4, v14\ns_lshl_b32 s{S_TMP}, s{S_B0}, 10\nv_add_u32 v14, s{S_TMP}, v14")
    a.nop(3)
    for k in range(4):
        a(f"v_add_f32 v{16+k}, v{OACC[0]+k}, v{OACC[1]+k}")
    a(f"ds_write_b128 v14, v[16:19] offset:{OB}")
    a(f"s_lshl_b32 s{S_TMP}, s{S_B1}, 2\nv_mov_b32 v15, s{S_TMP}")
    a("s_mov_b64 exec, 1")
    a(f"ds_add_rtn_u32 v14, v15, v2 offset:{F_CB0}")
    a("s_mov_b64 exec, -1")
    a("s_waitcnt lgkmcnt(0)")
    a(f"v_readfirstlane_b32 s{S_TMP}, v14")
    a(f"s_cmp_eq_u32 s{S_TMP}, 3\ns_cbranch_scc0 L_att_done")
    a(f"v_lshrrev_b32 v14, 5, v0\nv_lshlrev_b32 v15, 3, v14\ns_lshl_b32 s{S_TMP}, s{S_B1}, 4\nv_add_u32 v15, s{S_TMP}, v15")
    for wi in range(4):
        a(f"ds_read_b64 {vr(16+2*wi,2)}, v15 offset:{STL+32*wi}")
    a(f"v_lshlrev_b32 v15, 9, v14\nv_and_b32 v13, 31, v0\nv_lshl_add_u32 v15, v13, 4, v15\ns_lshl_b32 s{S_TMP}, s{S_B1}, 10\nv_add_u32 v15, s{S_TMP}, v15")
    for wi in range(4):
        a(f"ds_read_b128 {vr(24+4*wi,4)}, v15 offset:{OB+2048*wi}")
    a("s_waitcnt lgkmcnt(4)")
    a("v_max3_f32 v40, v16, v18, v20\nv_max_f32 v40, v40, v22")
    for wi in range(4):
        a(f"v_sub_f32 v{16+2*wi}, v{16+2*wi}, v40")
    for wi in range(4):
        a(f"v_exp_f32 v{16+2*wi}, v{16+2*wi}")
    a.nop(1)
    a("v_mul_f32 v41, v16, v17\nv_fmac_f32 v41, v18, v19\nv_fmac_f32 v41, v20, v21\nv_fmac_f32 v41, v22, v23")
    a("s_waitcnt lgkmcnt(0)")
    for k in range(4):
        a(f"v_mul_f32 v{44+k}, v16, v{24+k}")
        for wi in range(1, 4):
            a(f"v_fmac_f32 v{44+k}, v{16+2*wi}, v{24+4*wi+k}")
    for k in range(4):
        a(f"v_min_u32 v{44+k}, s{S_C1}, v{44+k}")
    a(f"v_min_u32 v40, s{S_C1}, v40\nv_min_u32 v41, s{S_C1}, v41")
    a("v_lshlrev_b32 v15, 13, v4\nv_lshl_add_u32 v15, v3, 4, v15")
    a(f"s_lshl_b32 s{S_C2}, s{S_KVH}, 15\ns_lshl_b32 s{S_TMP}, s{S_SPL}, 9\ns_add_u32 s{S_C2}, s{S_C2}, s{S_TMP}\ns_lshl_b32 s{S_TMP}, s{S_B1}, 8\ns_add_u32 s{S_C2}, s{S_C2}, s{S_TMP}\ns_add_u32 s{S_C2}, s{S_C2}, {OP}")
    a(f"buffer_store_dwordx4 v[44:47], v15, {S(SWS)}, s{S_C2} offen sc1")
    a("v_lshlrev_b32 v15, 8, v14")
    a(f"s_lshl_b32 s{S_C2}, s{S_KVH}, 9\ns_lshl_b32 s{S_TMP}, s{S_SPL}, 4\ns_add_u32 s{S_C2}, s{S_C2}, s{S_TMP}\ns_lshl_b32 s{S_TMP}, s{S_B1}, 3\ns_add_u32 s{S_C2}, s{S_C2}, s{S_TMP}\ns_add_u32 s{S_C2}, s{S_C2}, {ST}")
    a("s_mov_b32 exec_lo, 1\ns_mov_b32 exec_hi, 1")
    a(f"buffer_store_dwordx2 v[40:41], v15, {S(SWS)}, s{S_C2} offen sc1")
    a("s_mov_b64 exec, -1")
    stamp(a, 8)
    a.lab("L_att_done")
    a(f"s_cmp_eq_u32 s{S_B0}, 0\ns_cbranch_scc0 L_end")
    a(f"s_cmp_eq_u32 s{S_ROLE}, 1\ns_cbranch_scc0 L_end")
    a(f"s_lshr_b32 s{S_TMP}, s{S_RIDX}, 1\ns_lshl_b32 s{S_B2}, s{S_TMP}, 8\ns_add_u32 s{S_B2}, s{S_B2}, {ST}")
    a(f"s_lshl_b32 s{S_C2}, s{S_RIDX}, 13\ns_add_u32 s{S_C2}, s{S_C2}, {OP}")
    a("v_and_b32 v13, 31, v0\nv_lshlrev_b32 v13, 3, v13")
    a("v_lshlrev_b32 v14, 3, v4")
    a("v_lshlrev_b32 v15, 4, v0")
    def ld0():
        a(f"buffer_load_dwordx2 v[16:17], v13, {S(SWS)}, s{S_B2} offen sc1")
    poll_loop(a, ld0, [16, 17], 12, sleep=2)
    def ld1():
        for t in range(8):
            a(f"buffer_load_dwordx2 {vr(16+2*t,2)}, v14, {S(SWS)}, s{S_B2} offen offset:{32*t} sc1")
        for t in range(8):
            if t % 4 == 0: a(f"s_add_u32 s{S_TMP}, s{S_C2}, {t*1024}")
            a(f"buffer_load_dwordx4 {vr(32+4*t,4)}, v15, {S(SWS)}, s{S_TMP} offen offset:{(t%4)*1024} sc1")
    poll_loop(a, ld1, range(16, 64), 12, sleep=1)
    a("v_max3_f32 v12, v16, v18, v20\nv_max3_f32 v12, v12, v22, v24\nv_max3_f32 v12, v12, v26, v28\nv_max_f32 v12, v12, v30")
    a("v_mov_b32 v13, v12")
    a.nop(2)
    a("v_permlane32_swap_b32 v12, v13")
    a.nop(1)
    a("v_max_f32 v12, v12, v13")
    for t in range(8): a(f"v_sub_f32 v{16+2*t}, v{16+2*t}, v12")
    for t in range(8): a(f"v_exp_f32 v{16+2*t}, v{16+2*t}")
    a.nop(1)
    a("v_mul_f32 v64, v16, v17")
    for t in range(1, 8): a(f"v_fmac_f32 v64, v{16+2*t}, v{17+2*t}")
    for k in range(4):
        a(f"v_mul_f32 v{65+k}, v16, v{32+k}")
        for t in range(1, 8): a(f"v_fmac_f32 v{65+k}, v{16+2*t}, v{32+4*t+k}")
    for k in range(5): a(f"v_mov_b32 v{70+k}, v{64+k}")
    a.nop(2)
    for k in range(5): a(f"v_permlane32_swap_b32 v{64+k}, v{70+k}")
    a.nop(1)
    for k in range(5): a(f"v_add_f32 v{64+k}, v{64+k}, v{70+k}")
    a("v_rcp_f32 v64, v64\ns_nop 0")
    for k in range(4): a(f"v_mul_f32 v{65+k}, v64, v{65+k}")
    a("v_cvt_pk_bf16_f32 v66, v65, v66\nv_cvt_pk_bf16_f32 v67, v67, v68")
    a("v_and_b32 v13, 31, v0\nv_lshlrev_b32 v13, 3, v13")
    a(f"ds_write_b64 v13, v[66:67] offset:{OL}")
    a("s_waitcnt lgkmcnt(0)")
    lds_inc(a, F_O, 1, 2)
    stamp(a, 9)
    a.lab("L_end")
    a("s_endpgm")
    out += a.L
    out.append(f""".section .rodata,"a"
.p2align 6
.amdhsa_kernel {KN}
  .amdhsa_next_free_vgpr 168
  .amdhsa_next_free_sgpr 102
  .amdhsa_accum_offset 168
  .amdhsa_group_segment_fixed_size 0
  .amdhsa_kernarg_size 104
  .amdhsa_user_sgpr_count 2
  .amdhsa_user_sgpr_kernarg_segment_ptr 1
  .amdhsa_system_sgpr_workgroup_id_x 1
.end_amdhsa_kernel""")
    return "\n".join(out) + "\n"

if __name__ == "__main__":
    if len(sys.argv) > 2 and sys.argv[2] == "stamps": STAMPS = True
    if len(sys.argv) > 2 and sys.argv[2] == "diag": DIAG = True
    if len(sys.argv) > 2 and sys.argv[2] == "diag2": DIAG2 = True
    open(sys.argv[1], "w").write(gen())
```

```python
import sys

KN = "gated_mix__gqa_block_cached__swiglu_ffn__decode_kernel"
STAMPS = False

QP = 0x1A0000
GUP = 0x1C0000
OP = 0x10000
ST = 0x90000
FP = 0xA0000
NPROD = 208
NB = 0x190000
STAMPO = 0x8000000
F_INIT, F_Q, F_GO, F_CB0, F_CB1, F_GU, F_O, F_RED, F_GATE = 0, 4, 8, 12, 16, 20, 24, 28, 32
F_PUB = 36
F_H = 40
F_GI = 44
QL = 0x100
STL = 0x500
OB = 0x800
GUL = 0x2800
HL = 0x3800
OL = 0x3A00
REDL = 0x3B00
GATEL = 0x3D00
LDS_BYTES = 0x4000
SPIN_LIMIT = 400000

class A:
    def __init__(s): s.L = []; s.n = 0
    def __call__(s, t):
        for l in t.strip("\n").split("\n"): s.L.append("    " + l.strip())
    def lab(s, l): s.L.append(l + ":")
    def new(s, p="L"):
        s.n += 1; return f"{p}_{s.n}"
    def nop(s, k):
        while k > 0:
            c = min(k, 16); s(f"s_nop {c-1}"); k -= c

def vr(b, n=1): return f"v{b}" if n == 1 else f"v[{b}:{b+n-1}]"

def srd(a, q, lo, nbytes):
    a(f"s_mov_b32 s{q}, s{lo}\ns_mov_b32 s{q+1}, s{lo+1}\ns_mov_b32 s{q+2}, {nbytes}\ns_mov_b32 s{q+3}, 0x20000")

P_X, P_K, P_V, P_WQ, P_WO, P_BX, P_WG, P_WU = 36, 38, 40, 42, 44, 46, 48, 50
P_WD, P_GW, P_OUT, P_DBG, P_WS = 52, 54, 56, 58, 60
SX, SWS, SA, SB, SC, SDBG, SOUT = 8, 12, 16, 20, 24, 28, 32
def S(q): return f"s[{q}:{q+3}]"
S_WAVE = 3; S_U = 4; S_T = 5; S_TMP = 6; S_TMP2 = 7
S_ROLE = 62
S_RIDX = 63
S_PROD = 64
S_CNT = 65
S_B0 = 66; S_B1 = 67; S_B2 = 68; S_B3 = 69
S_EX = 70
S_EX2 = 72
S_SELLO = 74; S_SELHI = 75
S_KVH = 76; S_SPL = 77
S_C1 = 78; S_C2 = 79
S_ST0 = 80
S_FP = 88; S_FV = 92; S_CBQ = 90
S_STR = 96; S_JB = 97; S_JO = 98; S_JBS = 99; S_JX = 100; S_J56 = 91
POLL0 = 32
WIN = 4
WINF = 8
GOF = 1
OPRE = 1
QPRE = 1
KHOLD = 8
GISPIN = 40
PRE = 99
PREW = 99

DIAG = False
DIAG2 = False
def stamp(a, idx):
    if DIAG:
        a(f"s_memrealtime s[{S_ST0+2*0}:{S_ST0+1}]")
        a("s_waitcnt lgkmcnt(0)")
        if idx == 0: a(f"s_not_b32 s{S_ST0}, s{S_ST0}")
        a(f"v_mov_b32 v14, s{S_ST0}")
        a("v_mov_b32 v15, 0")
        a(f"s_mov_b64 s[{S_ST0+4}:{S_ST0+5}], exec")
        a("s_mov_b64 exec, 1")
        a(f"buffer_atomic_umax v14, v15, {S(SDBG)}, 0 offen offset:{4*idx}")
        a(f"s_mov_b64 exec, s[{S_ST0+4}:{S_ST0+5}]")
    elif STAMPS or DIAG2:
        a(f"s_memrealtime s[{S_ST0+2*0}:{S_ST0+1}]")
        a("s_waitcnt lgkmcnt(0)")
        a(f"v_mov_b32 v14, s{S_ST0}")
        a(f"s_lshl_b32 s{S_ST0+2}, s2, 6")
        a(f"s_add_u32 s{S_ST0+2}, s{S_ST0+2}, {STAMPO + 4*idx}")
        a("v_mov_b32 v15, 0")
        a(f"s_mov_b64 s[{S_ST0+4}:{S_ST0+5}], exec")
        a("s_mov_b64 exec, 1")
        a(f"buffer_store_dword v14, v15, {S(SWS)}, s{S_ST0+2} offen sc1")
        a(f"s_mov_b64 exec, s[{S_ST0+4}:{S_ST0+5}]")

def stamp_a0(a, idx):
    if STAMPS:
        l = a.new()
        a(f"s_cmp_eq_u32 s{S_B0}, 7\ns_cbranch_scc0 {l}")
        stamp(a, idx)
        a.lab(l)

def stamp_w(a, idx, w=1):
    if STAMPS:
        l = a.new()
        a(f"s_cmp_eq_u32 s{S_WAVE}, {w}\ns_cbranch_scc0 {l}")
        stamp(a, idx)
        a.lab(l)

def wait_lds(a, flag, target, vz, vt, limit=None):
    l = a.new("W"); d = a.new("WD")
    a(f"s_mov_b32 s{S_CNT}, 0")
    a.lab(l)
    a(f"ds_read_b32 v{vt}, v{vz} offset:{flag}")
    a("s_waitcnt lgkmcnt(0)")
    a(f"v_readfirstlane_b32 s{S_TMP}, v{vt}")
    a(f"s_cmp_ge_u32 s{S_TMP}, {target}")
    a(f"s_cbranch_scc1 {d}")
    a(f"s_add_u32 s{S_CNT}, s{S_CNT}, 1")
    a(f"s_cmp_gt_u32 s{S_CNT}, {SPIN_LIMIT if limit is None else limit}")
    a(f"s_cbranch_scc1 {d}")
    a("s_sleep 1")
    a(f"s_branch {l}")
    a.lab(d)

def group_flag_wait(a, want, first_sleep, sleep):
    l = a.new("G"); d = a.new("GD"); lv = a.new("GV"); lc = a.new("GC")
    a(f"s_mov_b32 s{S_CNT}, 0\ns_lshl_b32 s{S_B2}, s{S_KVH}, 4\ns_mov_b32 s{S_TMP2}, {want}")
    a(f"s_add_u32 s{S_FP}, s{P_DBG}, s{S_B2}\ns_addc_u32 s{S_FP+1}, s{P_DBG+1}, 0")
    if first_sleep: a(f"s_sleep {first_sleep}")
    a.lab(l)
    a(f"s_cmp_gt_u32 s{S_CNT}, 32\ns_cbranch_scc1 {lv}")
    a(f"s_load_dwordx4 s[{S_FV}:{S_FV+3}], s[{S_FP}:{S_FP+1}], 0 glc")
    a("s_waitcnt lgkmcnt(0)")
    a(f"s_and_b32 s{S_FV}, s{S_FV}, s{S_FV+1}\ns_and_b32 s{S_FV+2}, s{S_FV+2}, s{S_FV+3}\ns_and_b32 s{S_TMP}, s{S_FV}, s{S_FV+2}")
    a(f"s_branch {lc}")
    a.lab(lv)
    a(f"buffer_load_dwordx4 v[16:19], v1, {S(SDBG)}, s{S_B2} offen sc1")
    a("s_waitcnt vmcnt(0)")
    a("v_and_b32 v16, v16, v17\nv_and_b32 v18, v18, v19\nv_and_b32 v16, v16, v18\ns_nop 0")
    a(f"v_readfirstlane_b32 s{S_TMP}, v16")
    a.lab(lc)
    a(f"s_and_b32 s{S_TMP}, s{S_TMP}, s{S_TMP2}")
    a(f"s_cmp_eq_u32 s{S_TMP}, s{S_TMP2}\ns_cbranch_scc1 {d}")
    a(f"s_add_u32 s{S_CNT}, s{S_CNT}, 1\ns_cmp_gt_u32 s{S_CNT}, {SPIN_LIMIT}\ns_cbranch_scc1 {d}")
    a(f"s_sleep {sleep}\ns_branch {l}")
    a.lab(d)

def lds_inc(a, flag, vz, vone):
    a(f"s_mov_b64 s[{S_EX}:{S_EX+1}], exec\ns_mov_b64 exec, 1")
    a(f"ds_add_u32 v{vz}, v{vone} offset:{flag}")
    a(f"s_mov_b64 exec, s[{S_EX}:{S_EX+1}]")

def umax_chain(a, dst, regs):
    regs = list(regs)
    if len(regs) == 1:
        a(f"v_mov_b32 v{dst}, v{regs[0]}"); return
    if len(regs) == 2:
        a(f"v_max_u32 v{dst}, v{regs[0]}, v{regs[1]}"); return
    a(f"v_max3_u32 v{dst}, v{regs[0]}, v{regs[1]}, v{regs[2]}")
    i = 3
    while i < len(regs):
        if i + 1 < len(regs):
            a(f"v_max3_u32 v{dst}, v{dst}, v{regs[i]}, v{regs[i+1]}"); i += 2
        else:
            a(f"v_max_u32 v{dst}, v{dst}, v{regs[i]}"); i += 1

def poll_loop(a, emit_loads, regs, vt, sleep=2):
    l = a.new("P"); d = a.new("PD")
    a(f"s_mov_b32 s{S_CNT}, 0")
    a.lab(l)
    emit_loads()
    a("s_waitcnt vmcnt(0)")
    umax_chain(a, vt, regs)
    a(f"v_cmp_eq_u32 vcc, -1, v{vt}")
    a(f"s_cbranch_vccz {d}")
    a(f"s_add_u32 s{S_CNT}, s{S_CNT}, 1")
    a(f"s_cmp_gt_u32 s{S_CNT}, {SPIN_LIMIT}")
    a(f"s_cbranch_scc1 {d}")
    a(f"s_sleep {sleep}")
    a(f"s_branch {l}")
    a.lab(d)

def job_params_q(a):
    srd(a, SA, P_WQ, 576*8192)
    a(f"s_mov_b32 s{S_STR}, 8192\ns_and_b32 s{S_TMP}, s2, 3")
    a(f"s_mul_i32 s{S_JX}, s{S_TMP}, 288\ns_mul_i32 s{S_JB}, s{S_TMP}, {144*8192}")
    a(f"s_lshl_b32 s{S_JO}, s{S_TMP}, 15\ns_lshr_b32 s{S_TMP}, s2, 2")
    a(f"s_lshl_b32 s{S_TMP2}, s{S_TMP}, 7\ns_add_u32 s{S_JB}, s{S_JB}, s{S_TMP2}")
    a(f"s_lshl_b32 s{S_TMP2}, s{S_TMP}, 8\ns_add_u32 s{S_JO}, s{S_JO}, s{S_TMP2}\ns_add_u32 s{S_JO}, s{S_JO}, {QP}")
    a(f"s_mov_b32 s{S_JBS}, 16384")

def job_params_gu(a, sid, want_srd=True):
    lu = a.new(); lj = a.new()
    a(f"s_cmp_ge_u32 s{sid}, 288\ns_cbranch_scc1 {lu}")
    if want_srd: srd(a, SA, P_WG, 576*9216)
    a(f"s_mov_b32 s{S_JO}, {GUP}\ns_branch {lj}")
    a.lab(lu)
    if want_srd: srd(a, SA, P_WU, 576*9216)
    a(f"s_mov_b32 s{S_JO}, {GUP + 8*18432}\ns_sub_u32 s{sid}, s{sid}, 288")
    a.lab(lj)
    a(f"s_mov_b32 s{S_STR}, 9216\ns_and_b32 s{S_TMP}, s{sid}, 3")
    a(f"s_mul_i32 s{S_JX}, s{S_TMP}, 288\ns_mul_i32 s{S_JB}, s{S_TMP}, {144*9216}")
    a(f"s_mul_i32 s{S_TMP}, s{S_TMP}, {2*18432}\ns_add_u32 s{S_JO}, s{S_JO}, s{S_TMP}\ns_lshr_b32 s{S_TMP}, s{sid}, 2")
    a(f"s_lshl_b32 s{S_TMP2}, s{S_TMP}, 7\ns_add_u32 s{S_JB}, s{S_JB}, s{S_TMP2}")
    a(f"s_lshl_b32 s{S_TMP2}, s{S_TMP}, 8\ns_add_u32 s{S_JO}, s{S_JO}, s{S_TMP2}")
    a(f"s_mov_b32 s{S_JBS}, 18432")

def job_body(a):
    W = 16; XA = 140; ACC = 88; BT = 104; vO1, vO2, vL = 4, 5, 6
    t1, t2, t3 = 7, 8, 9
    a(f"v_lshrrev_b32 v{t1}, 4, v0\nv_bfe_u32 v{t2}, v0, 2, 1\nv_and_b32 v{t3}, 1, v0\nv_mul_u32_u24 v{t3}, 1152, v{t3}")
    a(f"v_lshl_add_u32 v{XA+9}, v{t2}, 6, v{t3}\nv_lshl_add_u32 v{XA+9}, v{t1}, 4, v{XA+9}")
    a(f"v_lshl_add_u32 v{t3}, v{t2}, 4, v{t3}\nv_lshl_add_u32 v{t3}, v{t1}, 2, v{t3}")
    a(f"buffer_load_dwordx4 {vr(XA,4)}, v{XA+9}, {S(SX)}, s{S_JX} offen")
    a(f"buffer_load_dwordx4 {vr(XA+4,4)}, v{XA+9}, {S(SX)}, s{S_JX} offen offset:128")
    a(f"buffer_load_dword v{XA+8}, v{t3}, {S(SX)}, s{S_JX} offen offset:256")
    a(f"v_bfe_u32 v{t2}, v0, 3, 1")
    a(f"v_lshlrev_b32 v{vO1}, 5, v{t2}\nv_lshl_add_u32 v{vO1}, v{t1}, 3, v{vO1}")
    a(f"v_lshlrev_b32 v{vO2}, 3, v{t2}\nv_lshl_add_u32 v{vO2}, v{t1}, 1, v{vO2}")
    a(f"v_mul_lo_u32 v{vO1}, v{vO1}, s{S_STR}\nv_mul_lo_u32 v{vO2}, v{vO2}, s{S_STR}")
    a(f"v_and_b32 v{t3}, 7, v0\nv_lshl_add_u32 v{vO1}, v{t3}, 4, v{vO1}\nv_lshl_add_u32 v{vO2}, v{t3}, 4, v{vO2}")
    a(f"s_mul_i32 s{S_J56}, s{S_STR}, 57")
    for J in range(2):
        for j in range(8):
            a(f"buffer_load_dwordx4 {vr(W+(J*8+j)*4,4)}, v{vO1}, {S(SA)}, s{S_JB} offen nt")
            a(f"s_add_u32 s{S_JB}, s{S_JB}, s{S_J56 if j == 7 else S_STR}")
    for j in range(2):
        a(f"buffer_load_dwordx4 {vr(W+64+j*4,4)}, v{vO2}, {S(SA)}, s{S_JB} offen nt")
        if j == 0: a(f"s_add_u32 s{S_JB}, s{S_JB}, s{S_STR}")
    lb = a.new()
    a(f"s_cmp_lg_u32 s{S_C2}, 0\ns_cbranch_scc1 {lb}")
    a("s_barrier")
    a.lab(lb)
    a(f"s_lshl_b32 s{S_TMP}, s{S_WAVE}, 10\ns_add_u32 s{S_TMP}, s{S_TMP}, {GUL}")
    a(f"v_lshlrev_b32 v{vL}, 9, v{t2}\nv_lshl_add_u32 v{vL}, v{t3}, 5, v{vL}\nv_add_u32 v{vL}, s{S_TMP}, v{vL}")
    a(f"v_cmp_eq_u32 s[{S_EX2}:{S_EX2+1}], v{t1}, v{t2}")
    a(f"v_lshlrev_b32 v{t3}, 4, v0\nv_add_u32 v{t3}, s{S_TMP}, v{t3}")
    a(f"v_mul_lo_u32 v{t1}, v{t1}, s{S_JBS}\nv_and_b32 v{t2}, 15, v0\nv_lshl_add_u32 v{t1}, v{t2}, 4, v{t1}")
    for k in (9, 10, 11): a(f"v_mov_b32 v{BT+k}, 0")
    a("s_waitcnt vmcnt(0)")
    for k in (9, 10, 11): a(f"v_mov_b32 v{XA+k}, 0")
    pend = None
    def flush(pu, pacc):
        a(f"s_mov_b64 exec, s[{S_EX2}:{S_EX2+1}]")
        for b in range(2):
            a(f"ds_write2_b32 v{vL}, v{pacc[0]+b}, v{pacc[1]+b} offset0:{b*64+2*pu} offset1:{b*64+2*pu+1}")
        a("s_mov_b64 exec, -1")
    for u in range(4):
        acc = [ACC + (u & 1)*8, ACC + (u & 1)*8 + 4]
        for p in range(2):
            sel = S_SELHI if p else S_SELLO
            for J in range(2):
                for t in range(4):
                    lo = W + (J*8 + 2*t)*4 + u; hi = W + (J*8 + 2*t + 1)*4 + u
                    a(f"v_perm_b32 v{BT + J*4 + t}, v{hi}, v{lo}, s{sel}")
            a(f"v_perm_b32 v{BT+8}, v{W+68+u}, v{W+64+u}, s{sel}")
            a.nop(2)
            a(f"v_mfma_f32_16x16x32_bf16 {vr(acc[p],4)}, {vr(XA,4)}, {vr(BT,4)}, 0")
            a(f"v_mfma_f32_16x16x32_bf16 {vr(acc[p],4)}, {vr(XA+4,4)}, {vr(BT+4,4)}, {vr(acc[p],4)}")
            a(f"v_mfma_f32_16x16x32_bf16 {vr(acc[p],4)}, {vr(XA+8,4)}, {vr(BT+8,4)}, {vr(acc[p],4)}")
            if p == 0 and pend is not None: flush(*pend)
        pend = (u, acc)
    a.nop(8)
    flush(*pend)
    a("s_waitcnt lgkmcnt(0)")
    a(f"ds_read_b128 v[16:19], v{t3}\nds_read_b128 v[20:23], v{t3} offset:512")
    a("s_waitcnt lgkmcnt(0)")
    for k in range(4): a(f"v_add_f32 v{16+k}, v{16+k}, v{20+k}")
    for k in range(4): a(f"v_min_u32 v{16+k}, s{S_C1}, v{16+k}")
    wait_lds(a, F_INIT, 1, 1, 12)
    a("s_mov_b32 exec_hi, 0")
    a(f"buffer_store_dwordx4 v[16:19], v{t1}, {S(SWS)}, s{S_JO} offen sc1")
    a("s_mov_b64 exec, -1")

def all_groups_wait(a, vt):
    l = a.new("G"); d = a.new("GD")
    a(f"s_mov_b32 s{S_CNT}, 0\nv_and_b32 v{vt}, 15, v0\nv_lshlrev_b32 v{vt}, 4, v{vt}\ns_mov_b32 s{S_TMP2}, 16")
    a.lab(l)
    a(f"buffer_load_dword v16, v{vt}, {S(SDBG)}, 0 offen sc1")
    a("s_waitcnt vmcnt(0)")
    a(f"v_cmp_ne_u32 vcc, s{S_TMP2}, v16")
    a(f"s_cbranch_vccz {d}")
    a(f"s_add_u32 s{S_CNT}, s{S_CNT}, 1\ns_cmp_gt_u32 s{S_CNT}, {SPIN_LIMIT}\ns_cbranch_scc1 {d}")
    a(f"s_sleep 16\ns_branch {l}")
    a.lab(d)

def wide_loads(a, srdq, sbase, W, vO, pre=99, hook=None):
    for j in range(8):
        if j == pre: hook()
        a(f"s_add_u32 s{S_TMP}, s{sbase}, {j*1152}")
        a(f"buffer_load_dwordx4 {vr(W+4*j,4)}, v{vO}, {S(srdq)}, s{S_TMP} offen nt")

def wide_compute(a, units, ACC, BT, nk=8):
    for e in range(8):
        u, p = e >> 1, e & 1
        sel = S_SELHI if p else S_SELLO
        for ui, (W, Aop) in enumerate(units):
            bt = BT + ((e*len(units) + ui) & 1)*4
            for t in range(nk//2):
                lo = W + (2*t)*4 + u; hi = W + (2*t+1)*4 + u
                a(f"v_perm_b32 v{bt+t}, v{hi}, v{lo}, s{sel}")
            a.nop(2)
            c = "0" if ui == 0 else vr(ACC+4*e, 4)
            if nk == 8:
                a(f"v_mfma_f32_16x16x32_bf16 {vr(ACC+4*e,4)}, {vr(Aop,4)}, {vr(bt,4)}, {c}")
            else:
                a(f"v_mfma_f32_16x16x16_bf16 {vr(ACC+4*e,4)}, {vr(Aop,2)}, {vr(bt,2)}, {c}")

def wide_publish(a, ACC, PK, vFO, cb, nlanes_mask):
    for b in range(2):
        for e in range(8):
            a(f"v_min_u32 v{PK+8*b+e}, s{S_C1}, v{ACC+4*e+b}")
    a(f"s_mov_b64 exec, {nlanes_mask}")
    for b in range(2):
        a(f"s_add_u32 s{S_TMP}, s{S_B3}, {(b*18 + 4*cb)*NPROD*128}")
        a(f"buffer_store_dwordx4 {vr(PK+8*b,4)}, v{vFO}, {S(SWS)}, s{S_TMP} offen sc1")
        a(f"buffer_store_dwordx4 {vr(PK+8*b+4,4)}, v{vFO}, {S(SWS)}, s{S_TMP} offen offset:16 sc1")
    a("s_mov_b64 exec, -1")

def rho_sum(a, ACC, T):
    regs = [ACC+4*e+b for e in range(8) for b in range(2)]
    for i, r in enumerate(regs): a(f"v_mov_b32 v{T+i}, v{r}")
    a.nop(2)
    for i, r in enumerate(regs): a(f"v_permlane16_swap_b32 v{r}, v{T+i}")
    a.nop(2)
    for i, r in enumerate(regs): a(f"v_add_f32_dpp v{r}, v{T+i}, v{r} row_ror:8 row_mask:0xf bank_mask:0xf")

def gen():
    a = A()
    hdr = open("gated_mix__gqa_block_cached__swiglu_ffn__decode.s.ref").read().split("\n")
    pre = [l for l in hdr if l.startswith(";") and "@launch" not in l]
    out = pre + [f"; @launch grid=(256,1,1) block=(768,1,1) lds={LDS_BYTES}",
                 '.amdgcn_target "amdgcn-amd-amdhsa--gfx950"', ".text", f".globl {KN}", ".p2align 8",
                 f".type {KN},@function", f"{KN}:"]
    a("s_cmp_ge_u32 s2, 256\ns_cbranch_scc1 L_end")
    a("s_load_dwordx16 s[36:51], s[0:1], 0\ns_load_dwordx8 s[52:59], s[0:1], 64\ns_load_dwordx2 s[60:61], s[0:1], 96")
    a("v_lshrrev_b32 v1, 6, v0\nv_and_b32 v0, 63, v0\ns_nop 0")
    a(f"v_readfirstlane_b32 s{S_WAVE}, v1")
    a("v_mov_b32 v1, 0\nv_mov_b32 v2, 1")
    a(f"s_and_b32 s{S_U}, s2, 7\ns_lshr_b32 s{S_T}, s2, 3")
    a(f"s_lshr_b32 s{S_KVH}, s2, 4\ns_and_b32 s{S_SPL}, s2, 15")
    a(f"s_bfe_u32 s{S_CBQ}, s2, 0x20001\ns_lshl_b32 s{S_CBQ}, s{S_CBQ}, 1\ns_bfe_u32 s{S_TMP}, s2, 0x10003\ns_add_u32 s{S_CBQ}, s{S_CBQ}, s{S_TMP}\ns_lshl_b32 s{S_TMP}, s{S_KVH}, 3\ns_add_u32 s{S_CBQ}, s{S_CBQ}, s{S_TMP}")
    a(f"s_mov_b32 s{S_SELLO}, 0x05040100\ns_mov_b32 s{S_SELHI}, 0x07060302\ns_mov_b32 s{S_C1}, 0xfffffffe")
    l1 = a.new(); l2 = a.new(); l3 = a.new()
    a(f"s_cmp_lt_u32 s{S_T}, 18\ns_cbranch_scc0 {l1}")
    a(f"s_mov_b32 s{S_ROLE}, 0\ns_mul_i32 s{S_RIDX}, s{S_U}, 18\ns_add_u32 s{S_RIDX}, s{S_RIDX}, s{S_T}\ns_add_u32 s{S_PROD}, s{S_RIDX}, 64\ns_branch {l3}")
    a.lab(l1)
    a(f"s_cmp_lt_u32 s{S_T}, 26\ns_cbranch_scc0 {l2}")
    a(f"s_mov_b32 s{S_ROLE}, 1\ns_lshl_b32 s{S_RIDX}, s{S_U}, 3\ns_add_u32 s{S_RIDX}, s{S_RIDX}, s{S_T}\ns_sub_u32 s{S_RIDX}, s{S_RIDX}, 18\ns_mov_b32 s{S_PROD}, s{S_RIDX}\ns_branch {l3}")
    a.lab(l2)
    a(f"s_sub_u32 s{S_RIDX}, s{S_T}, 26\ns_lshl_b32 s{S_RIDX}, s{S_RIDX}, 3\ns_add_u32 s{S_RIDX}, s{S_RIDX}, s{S_U}\ns_mov_b32 s{S_PROD}, 0")
    a(f"s_cmp_lt_u32 s{S_RIDX}, 36\ns_cselect_b32 s{S_ROLE}, 2, 3")
    a.lab(l3)
    a(f"s_lshl_b32 s{S_B3}, s{S_PROD}, 7\ns_add_u32 s{S_B3}, s{S_B3}, {FP}")
    a("s_waitcnt lgkmcnt(0)")
    srd(a, SX, P_X, 2304)
    srd(a, SWS, P_WS, 0x10000000)
    srd(a, SDBG, P_DBG, 256)
    a(f"s_cmp_ge_u32 s{S_WAVE}, 4\ns_cbranch_scc1 L_att")
    a(f"s_cmp_eq_u32 s{S_WAVE}, 1\ns_cbranch_scc1 L_x1")
    a("s_setprio 3")
    a(f"s_mov_b32 s{S_C2}, s{S_WAVE}")
    lg = a.new()
    a(f"s_cmp_eq_u32 s{S_WAVE}, 0\ns_cbranch_scc0 {lg}")
    job_params_q(a)
    a("s_branch L_job")
    a.lab(lg)
    a(f"s_sub_u32 s{S_B0}, s{S_WAVE}, 2\ns_lshl_b32 s{S_B0}, s{S_B0}, 8\ns_add_u32 s{S_B0}, s{S_B0}, s2")
    job_params_gu(a, S_B0)
    a("s_barrier")
    a("s_branch L_job")

    a.lab("L_x1")
    a("s_setprio 3")
    stamp(a, 0)
    a("v_lshlrev_b32 v3, 2, v0")
    a("ds_write_b32 v3, v1")
    a("v_mov_b32 v16, -1\nv_mov_b32 v17, -1\nv_mov_b32 v18, -1\nv_mov_b32 v19, -1")
    a("v_lshrrev_b32 v4, 4, v0\nv_and_b32 v5, 15, v0\nv_lshlrev_b32 v5, 4, v5")
    def slot_init():
        a(f"v_mul_lo_u32 v6, v4, s{S_JBS}\nv_add_u32 v6, v6, v5")
        a("s_mov_b32 exec_hi, 0")
        a(f"buffer_store_dwordx4 v[16:19], v6, {S(SWS)}, s{S_JO} offen sc1")
        a("s_mov_b64 exec, -1")
    job_params_q(a)
    slot_init()
    for k in range(2):
        a(f"s_add_u32 s{S_B0}, s2, {256*k}")
        job_params_gu(a, S_B0, want_srd=False)
        slot_init()
    ls = a.new()
    a(f"s_cmp_ge_u32 s2, 64\ns_cbranch_scc1 {ls}")
    a(f"s_add_u32 s{S_B0}, s2, 512")
    job_params_gu(a, S_B0, want_srd=False)
    slot_init()
    a.lab(ls)
    a("v_lshrrev_b32 v9, 4, v0\nv_lshlrev_b32 v9, 13, v9\nv_and_b32 v10, 15, v0\nv_lshl_add_u32 v9, v10, 4, v9")
    a(f"s_lshl_b32 s{S_B2}, s{S_KVH}, 15\ns_lshl_b32 s{S_TMP}, s{S_SPL}, 9\ns_add_u32 s{S_B2}, s{S_B2}, s{S_TMP}\ns_add_u32 s{S_B2}, s{S_B2}, {OP}")
    a(f"buffer_store_dwordx4 v[16:19], v9, {S(SWS)}, s{S_B2} offen sc1")
    a(f"buffer_store_dwordx4 v[16:19], v9, {S(SWS)}, s{S_B2} offen offset:256 sc1")
    a("v_lshlrev_b32 v9, 8, v0")
    a(f"s_lshl_b32 s{S_B2}, s{S_KVH}, 9\ns_lshl_b32 s{S_TMP}, s{S_SPL}, 4\ns_add_u32 s{S_B2}, s{S_B2}, s{S_TMP}\ns_add_u32 s{S_B2}, s{S_B2}, {ST}")
    a("s_mov_b64 exec, 3")
    a(f"buffer_store_dwordx4 v[16:19], v9, {S(SWS)}, s{S_B2} offen sc1")
    a("s_mov_b64 exec, -1")
    lskip = a.new()
    a(f"s_cmp_gt_u32 s{S_ROLE}, 1\ns_cbranch_scc1 {lskip}")
    a(f"v_lshrrev_b32 v9, 3, v0\ns_mov_b32 s{S_TMP}, {NPROD*128}\nv_mul_lo_u32 v9, v9, s{S_TMP}\nv_and_b32 v10, 7, v0\nv_lshl_add_u32 v9, v10, 4, v9")
    for i in range(5):
        if i == 4: a("s_mov_b32 exec_lo, -1\ns_mov_b32 exec_hi, 0")
        a(f"s_add_u32 s{S_TMP}, s{S_B3}, {i*8*NPROD*128}")
        a(f"buffer_store_dwordx4 v[16:19], v9, {S(SWS)}, s{S_TMP} offen sc1")
    a("s_mov_b64 exec, -1")
    a.lab(lskip)
    a(f"s_lshl_b32 s{S_B2}, s2, 7\ns_add_u32 s{S_B2}, s{S_B2}, {NB}")
    a("s_mov_b64 exec, 1")
    a(f"buffer_store_dword v16, v1, {S(SWS)}, s{S_B2} offen sc1")
    a("s_mov_b64 exec, -1")
    a("s_waitcnt lgkmcnt(0)")
    a("s_barrier")
    a("s_waitcnt vmcnt(0)")
    lds_inc(a, F_INIT, 1, 2)
    a(f"s_lshl_b32 s{S_TMP}, s{S_KVH}, 4\ns_add_u32 s{S_FP}, s{P_DBG}, s{S_TMP}\ns_addc_u32 s{S_FP+1}, s{P_DBG+1}, 0")
    a(f"s_mov_b32 s{S_FV}, 1\ns_atomic_add s{S_FV}, s[{S_FP}:{S_FP+1}], 0 glc")
    a("s_waitcnt lgkmcnt(0)")
    ln = a.new(); d = a.new("GD"); l = a.new("G"); lv = a.new("GV"); lc = a.new("GC")
    a(f"s_cmp_eq_u32 s{S_FV}, 15\ns_cbranch_scc0 {ln}")
    a(f"s_lshl_b32 s{S_TMP}, s{S_KVH}, 11\ns_add_u32 s{S_TMP}, s{S_TMP}, {NB}\ns_add_u32 s{S_FP}, s{P_WS}, s{S_TMP}\ns_addc_u32 s{S_FP+1}, s{P_WS+1}, 0\ns_mov_b32 s{S_FV}, 2")
    for k in range(16):
        a(f"s_atomic_add s{S_FV}, s[{S_FP}:{S_FP+1}], {128*k}")
    a(f"s_branch {d}")
    a.lab(ln)
    a(f"s_add_u32 s{S_FP}, s{P_WS}, s{S_B2}\ns_addc_u32 s{S_FP+1}, s{P_WS+1}, 0\ns_mov_b32 s{S_CNT}, 0")
    a.lab(l)
    a(f"s_cmp_gt_u32 s{S_CNT}, 64\ns_cbranch_scc1 {lv}")
    a(f"s_load_dword s{S_TMP}, s[{S_FP}:{S_FP+1}], 0 glc")
    a("s_waitcnt lgkmcnt(0)")
    a(f"s_branch {lc}")
    a.lab(lv)
    a(f"buffer_load_dword v9, v1, {S(SWS)}, s{S_B2} offen sc1")
    a("s_waitcnt vmcnt(0)")
    a(f"v_readfirstlane_b32 s{S_TMP}, v9")
    a.lab(lc)
    a(f"s_cmp_eq_u32 s{S_TMP}, 1\ns_cbranch_scc1 {d}")
    a(f"s_add_u32 s{S_CNT}, s{S_CNT}, 1\ns_cmp_gt_u32 s{S_CNT}, {SPIN_LIMIT}\ns_cbranch_scc1 {d}")
    a(f"s_sleep 2\ns_branch {l}")
    a.lab(d)
    stamp(a, 2)
    if QPRE:
        pl = a.new("Q"); pd = a.new("QD")
        a(f"s_lshl_b32 s{S_TMP}, s{S_KVH}, 10\ns_add_u32 s{S_TMP}, s{S_TMP}, {QP}\ns_add_u32 s{S_FP}, s{P_WS}, s{S_TMP}\ns_addc_u32 s{S_FP+1}, s{P_WS+1}, 0\ns_mov_b32 s{S_CNT}, 0")
        a.lab(pl)
        R = [36, 37, 38, 39, 40, 41, 42, 43, 46, 47, 92, 93, 94, 95, 86, 87]
        for ks in range(4):
            for c in range(4):
                a(f"s_load_dword s{R[ks*4+c]}, s[{S_FP}:{S_FP+1}], {ks*32768 + 16384 + c*256 + 252} glc")
        a("s_waitcnt lgkmcnt(0)")
        for k in range(1, 16): a(f"s_max_u32 s36, s36, s{R[k]}")
        a(f"s_cmp_lg_u32 s36, -1\ns_cbranch_scc1 {pd}")
        a(f"s_add_u32 s{S_CNT}, s{S_CNT}, 1\ns_cmp_gt_u32 s{S_CNT}, 40\ns_cbranch_scc1 {pd}")
        a(f"s_sleep 4\ns_branch {pl}")
        a.lab(pd)
    a("v_lshlrev_b32 v9, 4, v0")
    a(f"s_lshl_b32 s{S_B2}, s{S_KVH}, 10\ns_add_u32 s{S_B2}, s{S_B2}, {QP}")
    def ld():
        for ks in range(4):
            for b in range(2):
                a(f"s_add_u32 s{S_TMP}, s{S_B2}, {ks*32768 + b*16384}")
                a(f"buffer_load_dwordx4 {vr(16+(ks*2+b)*4,4)}, v9, {S(SWS)}, s{S_TMP} offen sc1")
        lds_inc(a, F_GI, 1, 2)
    poll_loop(a, ld, range(16, 48), 10, sleep=4)
    for b in range(2):
        for i in range(4):
            a(f"v_add_f32 v{16+b*4+i}, v{16+b*4+i}, v{24+b*4+i}\nv_add_f32 v{32+b*4+i}, v{32+b*4+i}, v{40+b*4+i}")
        for i in range(4):
            a(f"v_add_f32 v{16+b*4+i}, v{16+b*4+i}, v{32+b*4+i}")
        a(f"v_cvt_pk_bf16_f32 v{48+2*b}, v{16+b*4}, v{17+b*4}\nv_cvt_pk_bf16_f32 v{49+2*b}, v{18+b*4}, v{19+b*4}")
    a("v_lshlrev_b32 v9, 3, v0")
    a(f"ds_write_b64 v9, v[48:49] offset:{QL}\nds_write_b64 v9, v[50:51] offset:{QL+512}")
    a("s_waitcnt lgkmcnt(0)")
    lds_inc(a, F_Q, 1, 2)
    stamp(a, 3)
    a("s_branch L_aux2")
    a.lab("L_job")
    job_body(a)
    a(f"s_cmp_lg_u32 s{S_C2}, 0\ns_cbranch_scc1 L_aux2")
    stamp(a, 1)
    a("s_cmp_ge_u32 s2, 64\ns_cbranch_scc1 L_aux2")
    a(f"s_mov_b32 s{S_C2}, 1\ns_add_u32 s{S_B0}, s2, 512")
    job_params_gu(a, S_B0)
    a("s_branch L_job")

    a.lab("L_aux2")
    a("s_setprio 0")
    a(f"s_cmp_eq_u32 s{S_ROLE}, 0\ns_cbranch_scc1 L_ffn")
    a(f"s_cmp_eq_u32 s{S_ROLE}, 1\ns_cbranch_scc1 L_wo")
    a(f"s_cmp_eq_u32 s{S_ROLE}, 2\ns_cbranch_scc1 L_red0")
    a("s_endpgm")
    a.lab("L_red0")
    a(f"s_cmp_eq_u32 s{S_WAVE}, 3\ns_cbranch_scc0 L_red")
    srd(a, SA, P_GW, 1152)
    a("v_and_b32 v3, 31, v0\nv_mul_u32_u24 v3, 36, v3\nv_lshrrev_b32 v4, 5, v0\nv_mul_u32_u24 v4, 1152, v4\nv_add_u32 v4, v4, v3")
    for i in range(9):
        a(f"buffer_load_dword v{16+i}, v4, {S(SX)}, 0 offen offset:{4*i}")
        a(f"buffer_load_dword v{32+i}, v3, {S(SA)}, 0 offen offset:{4*i}")
    a("v_mov_b32 v5, 0\ns_waitcnt vmcnt(0)")
    for i in range(9):
        a(f"v_lshlrev_b32 v6, 16, v{16+i}\nv_and_b32 v7, 0xffff0000, v{16+i}\nv_lshlrev_b32 v8, 16, v{32+i}\nv_and_b32 v9, 0xffff0000, v{32+i}")
        a("v_mul_f32 v6, v6, v8\nv_mul_f32 v7, v7, v9\nv_cvt_pk_bf16_f32 v6, v6, v7")
        a("v_lshlrev_b32 v7, 16, v6\nv_and_b32 v6, 0xffff0000, v6\nv_add_f32 v5, v5, v7\nv_add_f32 v5, v5, v6")
    for k in (1, 2, 4, 8):
        a.nop(2)
        a(f"v_add_f32_dpp v5, v5, v5 row_ror:{k} row_mask:0xf bank_mask:0xf")
    a("v_mov_b32 v6, v5")
    a.nop(2)
    a("v_permlane16_swap_b32 v5, v6")
    a.nop(1)
    a("v_add_f32 v5, v5, v6")
    a("v_cvt_pk_bf16_f32 v5, v5, v5\nv_and_b32 v5, 0xffff0000, v5")
    a("v_mul_f32 v6, 0xbfb8aa3b, v5\nv_exp_f32 v6, v6\ns_nop 0\nv_add_f32 v6, 1.0, v6\nv_rcp_f32 v6, v6\ns_nop 0")
    a("v_cvt_pk_bf16_f32 v6, v6, v6\nv_and_b32 v6, 0xffff0000, v6")
    a("v_lshrrev_b32 v7, 5, v0\nv_lshlrev_b32 v7, 2, v7")
    a(f"ds_write_b32 v7, v6 offset:{GATEL}")
    a("s_waitcnt lgkmcnt(0)")
    lds_inc(a, F_GATE, 1, 2)
    a("s_branch L_red")

    a.lab("L_ffn")
    WD = 88; WH = 120; XA = 136
    vOW, vFO, vOH = 167, 164, 165
    def att_done():
        wait_lds(a, F_PUB, 2, 1, 10)
    lh = a.new()
    a(f"s_cmp_eq_u32 s{S_WAVE}, 2\ns_cbranch_scc0 {lh}")
    all_groups_wait(a, 9)
    a(f"v_lshrrev_b32 v9, 5, v0\ns_mov_b32 s{S_TMP}, 18432\nv_mul_lo_u32 v9, v9, s{S_TMP}\nv_and_b32 v10, 31, v0\nv_lshl_add_u32 v9, v10, 2, v9")
    a(f"s_lshl_b32 s{S_B2}, s{S_RIDX}, 7\ns_add_u32 s{S_B2}, s{S_B2}, {GUP}")
    def ldh():
        for k in range(8):
            a(f"s_add_u32 s{S_TMP}, s{S_B2}, {k*2*18432}")
            a(f"buffer_load_dword v{16+k}, v9, {S(SWS)}, s{S_TMP} offen sc1")
    poll_loop(a, ldh, range(16, 24), 10, sleep=16)
    a("v_add_f32 v16, v16, v17\nv_add_f32 v18, v18, v19\nv_add_f32 v20, v20, v21\nv_add_f32 v22, v22, v23\nv_add_f32 v16, v16, v18\nv_add_f32 v20, v20, v22")
    a("v_cvt_pk_bf16_f32 v16, v16, v20\nv_and_b32 v20, 0xffff0000, v16\nv_lshlrev_b32 v16, 16, v16")
    a("v_mul_f32 v17, 0xbfb8aa3b, v16\nv_exp_f32 v17, v17\ns_nop 0\nv_add_f32 v17, 1.0, v17\nv_rcp_f32 v17, v17\ns_nop 0\nv_mul_f32 v17, v16, v17")
    a("v_cvt_pk_bf16_f32 v17, v17, v17\nv_and_b32 v17, 0xffff0000, v17\nv_mul_f32 v17, v17, v20\nv_cvt_pk_bf16_f32 v17, v17, v17")
    a("v_lshlrev_b32 v7, 1, v0")
    a(f"ds_write_b16 v7, v17 offset:{HL}")
    a("s_waitcnt lgkmcnt(0)")
    lds_inc(a, F_H, 1, 2)
    stamp(a, 13)
    a.lab(lh)
    srd(a, SB, P_WD, 4608*1152)
    a(f"v_lshrrev_b32 v7, 4, v0\nv_mul_u32_u24 v{vOW}, {8*1152}, v7\nv_and_b32 v8, 15, v0\nv_lshl_add_u32 v{vOW}, v8, 4, v{vOW}")
    a(f"v_bfe_u32 v7, v0, 3, 1\nv_lshrrev_b32 v8, 4, v0\nv_lshlrev_b32 v7, 4, v7\nv_lshl_add_u32 v7, v8, 2, v7\nv_mul_u32_u24 v{vOH}, 1152, v7\nv_and_b32 v8, 7, v0\nv_lshl_add_u32 v{vOH}, v8, 4, v{vOH}")
    a(f"v_bfe_u32 v7, v0, 2, 2\ns_mov_b32 s{S_TMP}, {NPROD*128}\nv_mul_lo_u32 v{vFO}, v7, s{S_TMP}\nv_and_b32 v8, 3, v0\nv_lshl_add_u32 v{vFO}, v8, 5, v{vFO}")
    a(f"s_mul_i32 s{S_B0}, s{S_RIDX}, {32*1152}")
    a(f"s_lshl_b32 s{S_TMP}, s{S_WAVE}, 8\ns_add_u32 s{S_B2}, s{S_B0}, s{S_TMP}")
    a(f"s_mul_i32 s{S_TMP2}, s{S_WAVE}, {4*NPROD*128}\ns_add_u32 s{S_B3}, s{S_B3}, s{S_TMP2}")
    a(f"v_and_b32 v8, 1, v0\nv_lshlrev_b32 v8, 6, v8\nv_lshrrev_b32 v9, 4, v0\nv_lshl_add_u32 v11, v9, 4, v8")
    a("v_lshl_add_u32 v8, v9, 3, v8\nv_bfe_u32 v9, v0, 2, 1\nv_lshl_add_u32 v8, v9, 5, v8")
    wait_lds(a, F_H, 1, 1, 10)
    a(f"ds_read_b128 {vr(XA,4)}, v11 offset:{HL}\nds_read_b64 {vr(XA+4,2)}, v8 offset:{HL}")
    if GOF == 0: wait_lds(a, F_GO, 8, 1, 10)
    else: att_done()
    stamp(a, 4)
    wide_loads(a, SB, S_B2, WD, vOW)
    lnh = a.new()
    a(f"s_cmp_eq_u32 s{S_WAVE}, 0\ns_cbranch_scc0 {lnh}")
    for j in range(4):
        a(f"s_add_u32 s{S_TMP}, s{S_B0}, {j*1152 + 1024}")
        a(f"buffer_load_dwordx4 {vr(WH+4*j,4)}, v{vOH}, {S(SB)}, s{S_TMP} offen nt")
    ACCW = 16; PK = 48; BTW = 64; ACCH = 16
    a("s_waitcnt vmcnt(4)")
    lj = a.new()
    a(f"s_branch {lj}")
    a.lab(lnh)
    a("s_waitcnt vmcnt(0)")
    a.lab(lj)
    wide_compute(a, [(WD, XA)], ACCW, BTW)
    a.nop(8)
    wide_publish(a, ACCW, PK, vFO, 0, "0xffff")
    lend = a.new()
    a(f"s_cmp_eq_u32 s{S_WAVE}, 0\ns_cbranch_scc0 {lend}")
    a("s_waitcnt vmcnt(4)")
    wide_compute(a, [(WH, XA+4)], ACCH, BTW, nk=4)
    a.nop(8)
    rho_sum(a, ACCH, 148)
    wide_publish(a, ACCH, 88, vFO, 4, "0xff")
    a.lab(lend)
    stamp(a, 5)
    a("s_endpgm")

    a.lab("L_wo")
    W0 = 16; W1 = 48; WH = 80; OA = 112; ACCW = 120; BTW = 4; PK = 152-0
    vOW, vFO, vOHh = 164, 165, 166
    srd(a, SB, P_WO, 4096*1152)
    a(f"v_lshrrev_b32 v7, 4, v0\nv_mul_u32_u24 v{vOW}, {8*1152}, v7\nv_and_b32 v8, 15, v0\nv_lshl_add_u32 v{vOW}, v8, 4, v{vOW}")
    a(f"v_bfe_u32 v7, v0, 2, 2\ns_mov_b32 s{S_TMP}, {NPROD*128}\nv_mul_lo_u32 v{vFO}, v7, s{S_TMP}\nv_and_b32 v8, 3, v0\nv_lshl_add_u32 v{vFO}, v8, 5, v{vFO}")
    a(f"v_bfe_u32 v7, v0, 3, 1\nv_lshrrev_b32 v8, 4, v0\nv_lshlrev_b32 v7, 5, v7\nv_lshl_add_u32 v7, v8, 3, v7\nv_mul_u32_u24 v{vOHh}, 1152, v7\nv_and_b32 v8, 7, v0\nv_lshl_add_u32 v{vOHh}, v8, 4, v{vOHh}")
    a(f"s_mul_i32 s{S_B0}, s{S_RIDX}, {64*1152}")
    a(f"s_lshl_b32 s{S_TMP}, s{S_WAVE}, 8\ns_add_u32 s{S_B2}, s{S_B0}, s{S_TMP}\ns_add_u32 s{S_B1}, s{S_B2}, {32*1152}")
    wait_lds(a, F_GO, 8, 1, 10)
    wide_loads(a, SB, S_B2, W0, vOW, PREW, att_done)
    wide_loads(a, SB, S_B1, W1, vOW)
    lnh = a.new()
    a(f"s_cmp_eq_u32 s{S_WAVE}, 0\ns_cbranch_scc0 {lnh}")
    a(f"s_add_u32 s{S_B1}, s{S_B0}, 1024")
    wide_loads(a, SB, S_B1, WH, vOHh)
    a.lab(lnh)
    a(f"v_and_b32 v8, 1, v0\nv_lshlrev_b32 v8, 7, v8\nv_lshrrev_b32 v9, 4, v0\nv_lshl_add_u32 v8, v9, 4, v8\nv_bfe_u32 v9, v0, 2, 1\nv_lshl_add_u32 v9, v9, 6, v8")
    wait_lds(a, F_O, 1, 1, 10)
    a(f"ds_read_b128 {vr(OA,4)}, v8 offset:{OL}\nds_read_b128 {vr(OA+4,4)}, v8 offset:{OL+64}\nds_read_b128 v[160:163], v9 offset:{OL}")
    a("s_waitcnt vmcnt(0) lgkmcnt(0)")
    wide_compute(a, [(W0, OA), (W1, OA+4)], ACCW, BTW)
    a.nop(8)
    a(f"s_mul_i32 s{S_TMP2}, s{S_WAVE}, {4*NPROD*128}\ns_add_u32 s{S_B3}, s{S_B3}, s{S_TMP2}")
    wide_publish(a, ACCW, 16, vFO, 0, "0xffff")
    lend = a.new()
    a(f"s_cmp_eq_u32 s{S_WAVE}, 0\ns_cbranch_scc0 {lend}")
    wide_compute(a, [(WH, 160)], ACCW, BTW)
    a.nop(8)
    rho_sum(a, ACCW, 48)
    wide_publish(a, ACCW, 64, vFO, 4, "0xff")
    a.lab(lend)
    stamp(a, 6)
    a("s_endpgm")

    a.lab("L_red")
    srd(a, SOUT, P_OUT, 2304)
    a("v_lshlrev_b32 v9, 4, v0")
    a(f"s_mul_i32 s{S_B2}, s{S_RIDX}, {NPROD*128}\ns_add_u32 s{S_B2}, s{S_B2}, {FP}")
    wait_lds(a, F_Q, 1, 1, 10)
    wait_lds(a, F_CB0, 4, 1, 10)
    wait_lds(a, F_CB1, 4, 1, 10)
    all_groups_wait(a, 11)
    lb = a.new(); lj = a.new()
    a(f"s_cmp_eq_u32 s{S_WAVE}, 0\ns_cbranch_scc0 {lb}")
    def mk(n):
        def ld():
            for i in range(n):
                a(f"s_add_u32 s{S_TMP}, s{S_B2}, {i*1024}")
                a(f"buffer_load_dwordx4 {vr(16+4*i,4)}, v9, {S(SWS)}, s{S_TMP} offen sc1")
        return ld
    poll_loop(a, mk(1), range(16, 20), 10, sleep=4)
    poll_loop(a, mk(8), range(16, 48), 10, sleep=2)
    for i in (6, 7):
        for k in range(4): a(f"v_add_f32 v{16+4*(i-6)+k}, v{16+4*(i-6)+k}, v{16+4*i+k}")
    a(f"s_branch {lj}")
    a.lab(lb)
    a(f"s_mul_i32 s{S_TMP}, s{S_WAVE}, {48*128}\ns_add_u32 s{S_B2}, s{S_B2}, s{S_TMP}\ns_add_u32 s{S_B2}, s{S_B2}, {(64-48)*128}")
    poll_loop(a, mk(1), range(16, 20), 10, sleep=4)
    poll_loop(a, mk(6), range(16, 40), 10, sleep=2)
    a.lab(lj)
    for k in range(4):
        a(f"v_add_f32 v{16+k}, v{16+k}, v{20+k}\nv_add_f32 v{24+k}, v{24+k}, v{28+k}\nv_add_f32 v{32+k}, v{32+k}, v{36+k}")
    for k in range(4):
        a(f"v_add_f32 v{16+k}, v{16+k}, v{24+k}")
    for k in range(4):
        a(f"v_add_f32 v{16+k}, v{16+k}, v{32+k}")
    a.nop(2)
    for k in range(4):
        a(f"v_add_f32_dpp v{16+k}, v{16+k}, v{16+k} row_ror:8 row_mask:0xf bank_mask:0xf")
    for sw in ("v_permlane16_swap_b32", "v_permlane32_swap_b32"):
        for k in range(4): a(f"v_mov_b32 v{20+k}, v{16+k}")
        a.nop(2)
        for k in range(4): a(f"{sw} v{16+k}, v{20+k}")
        a.nop(1)
        for k in range(4): a(f"v_add_f32 v{16+k}, v{16+k}, v{20+k}")
    a(f"s_lshl_b32 s{S_TMP}, s{S_WAVE}, 7\nv_add_u32 v9, s{S_TMP}, v9")
    a("s_mov_b64 exec, 0xff")
    a(f"ds_write_b128 v9, v[16:19] offset:{REDL}")
    a("s_mov_b64 exec, 1")
    a(f"ds_add_rtn_u32 v10, v1, v2 offset:{F_RED}")
    a("s_mov_b64 exec, -1")
    a("s_waitcnt lgkmcnt(0)")
    a(f"v_readfirstlane_b32 s{S_TMP}, v10")
    a(f"s_cmp_eq_u32 s{S_TMP}, 3\ns_cbranch_scc0 L_end")
    wait_lds(a, F_GATE, 1, 1, 10)
    a("v_lshlrev_b32 v9, 2, v0")
    a(f"ds_read_b32 v16, v9 offset:{REDL}\nds_read_b32 v17, v9 offset:{REDL+128}\nds_read_b32 v18, v9 offset:{REDL+256}\nds_read_b32 v19, v9 offset:{REDL+384}")
    a(f"s_cmp_ge_u32 s{S_RIDX}, 18\ns_cselect_b32 s{S_TMP}, 4, 0\nv_mov_b32 v11, s{S_TMP}")
    a(f"ds_read_b32 v20, v11 offset:{GATEL}")
    a("s_waitcnt lgkmcnt(0)")
    a("v_add_f32 v17, v17, v18\nv_add_f32 v17, v17, v19")
    a("v_sub_f32 v21, 1.0, v20")
    a("v_cvt_pk_bf16_f32 v16, v16, v17\nv_cvt_pk_bf16_f32 v21, v21, v21")
    a("v_and_b32 v17, 0xffff0000, v16\nv_lshlrev_b32 v16, 16, v16\nv_and_b32 v21, 0xffff0000, v21")
    a("v_mul_f32 v16, v20, v16\nv_mul_f32 v17, v21, v17\nv_cvt_pk_bf16_f32 v16, v16, v17")
    a("v_and_b32 v17, 0xffff0000, v16\nv_lshlrev_b32 v16, 16, v16\nv_add_f32 v16, v16, v17\nv_cvt_pk_bf16_f32 v16, v16, v16")
    a(f"v_lshlrev_b32 v9, 1, v0\ns_lshl_b32 s{S_TMP}, s{S_RIDX}, 6")
    a("s_mov_b32 exec_lo, -1\ns_mov_b32 exec_hi, 0")
    a(f"buffer_store_short v16, v9, {S(SOUT)}, s{S_TMP} offen")
    stamp(a, 7)
    if DIAG2:
        a("s_mov_b64 exec, -1")
        a(f"s_cmp_eq_u32 s{S_RIDX}, 0\ns_cbranch_scc0 L_end")
        for _ in range(6): a("s_sleep 127")
        a(f"s_sub_u32 s{S_C2}, s{S_ST0}, 20000")
        a(f"v_lshlrev_b32 v9, 6, v0\ns_mov_b32 s{S_B2}, {STAMPO}")
        for q in range(4):
            a(f"s_add_u32 s{S_TMP}, s{S_B2}, {q*4096}")
            for k in range(3):
                a(f"buffer_load_dwordx4 {vr(16+q*12+k*4,4)}, v9, {S(SWS)}, s{S_TMP} offen offset:{16*k} sc1")
        a("s_waitcnt vmcnt(0)")
        a(f"s_mov_b32 s{S_TMP}, 100000")
        for r in range(16, 64):
            a(f"v_subrev_u32 v{r}, s{S_C2}, v{r}")
            a(f"v_cmp_gt_u32 vcc, s{S_TMP}, v{r}")
            a("s_nop 1")
            a(f"v_sub_u32 v{r+48}, s{S_TMP}, v{r}")
            a(f"v_cndmask_b32 v{r}, 0, v{r}, vcc")
            a(f"v_cndmask_b32 v{r+48}, 0, v{r+48}, vcc")
        outs = [(16, i) for i in range(10)] + [(64, i) for i in (0, 2, 3, 8, 5, 7)]
        for o, (base, i) in enumerate(outs):
            a(f"v_max3_u32 v{120+o}, v{base+i}, v{base+12+i}, v{base+24+i}")
            a(f"v_max_u32 v{120+o}, v{120+o}, v{base+36+i}")
        for k in (1, 2, 4, 8):
            a.nop(2)
            for o in range(16): a(f"v_max_u32_dpp v{120+o}, v{120+o}, v{120+o} row_ror:{k} row_mask:0xf bank_mask:0xf")
        for sw in ("v_permlane16_swap_b32", "v_permlane32_swap_b32"):
            for o in range(16): a(f"v_mov_b32 v{140+o}, v{120+o}")
            a.nop(2)
            for o in range(16): a(f"{sw} v{120+o}, v{140+o}")
            a.nop(1)
            for o in range(16): a(f"v_max_u32 v{120+o}, v{120+o}, v{140+o}")
        for o in range(10, 16): a(f"v_sub_u32 v{120+o}, s{S_TMP}, v{120+o}")
        a("s_mov_b64 exec, 1")
        for k in range(4): a(f"buffer_store_dwordx4 {vr(120+4*k,4)}, v1, {S(SDBG)}, 0 offen offset:{16*k}")
    a("s_endpgm")

    a.lab("L_att")
    KR = 16; VRG = 80; QB = 144; S01 = 160
    srd(a, SA, P_K, 0x2000000)
    srd(a, SB, P_V, 0x2000000)
    a(f"s_sub_u32 s{S_B0}, s{S_WAVE}, 4\ns_and_b32 s{S_B1}, s{S_B0}, 1\ns_lshr_b32 s{S_B2}, s{S_B0}, 1")
    a(f"s_lshl_b32 s{S_TMP}, s{S_B1}, 4\ns_add_u32 s{S_TMP}, s{S_TMP}, s{S_KVH}\ns_lshl_b32 s{S_C2}, s{S_TMP}, 20")
    a(f"s_lshl_b32 s{S_TMP}, s{S_SPL}, 16\ns_add_u32 s{S_C2}, s{S_C2}, s{S_TMP}\ns_lshl_b32 s{S_TMP}, s{S_B2}, 14\ns_add_u32 s{S_C2}, s{S_C2}, s{S_TMP}")
    a("v_and_b32 v3, 15, v0\nv_lshrrev_b32 v4, 4, v0")
    a("v_lshlrev_b32 v5, 8, v3\nv_lshl_add_u32 v5, v4, 4, v5")
    a("v_lshlrev_b32 v6, 10, v4\nv_lshl_add_u32 v6, v3, 4, v6")
    a("s_barrier")
    n = 0
    for T in range(4):
        a(f"s_add_u32 s{S_TMP}, s{S_C2}, {T*4096}")
        for j in range(4):
            if WIN and n >= WIN: a(f"s_waitcnt vmcnt({WIN-1})")
            n += 1
            a(f"buffer_load_dwordx4 {vr(KR+(T*4+j)*4,4)}, v5, {S(SA)}, s{S_TMP} offen offset:{j*64} nt")
    if KHOLD < 16:
        a(f"s_waitcnt vmcnt({KHOLD})")
        wait_lds(a, F_GI, 1, 1, 12, limit=GISPIN)
    for T in range(4):
        a(f"s_add_u32 s{S_TMP}, s{S_C2}, {T*4096}")
        for r in range(4):
            if WIN and n >= WIN: a(f"s_waitcnt vmcnt({WIN-1})")
            n += 1
            a(f"buffer_load_dwordx4 {vr(VRG+(T*4+r)*4,4)}, v6, {S(SB)}, s{S_TMP} offen offset:{r*256} nt")
    lds_inc(a, F_GO, 1, 2)
    stamp_a0(a, 10)
    a("v_and_b32 v7, 1, v0\nv_lshlrev_b32 v7, 4, v7\nv_mov_b32 v12, 0xffff\nv_lshlrev_b32 v12, v7, v12\nv_bfe_u32 v7, v0, 1, 2")
    for u in range(4):
        a(f"v_cmp_eq_u32 vcc, {u}, v7\ns_nop 1\nv_cndmask_b32 v{8+u}, 0, v12, vcc")
    a(f"v_bfe_u32 v7, v0, 3, 1\nv_lshlrev_b32 v7, 8, v7\nv_lshl_add_u32 v7, v4, 4, v7\ns_lshl_b32 s{S_TMP}, s{S_B1}, 9\nv_add_u32 v7, s{S_TMP}, v7")
    wait_lds(a, F_Q, 1, 1, 12)
    for j in range(4):
        a(f"ds_read_b128 {vr(QB+4*j,4)}, v7 offset:{QL+64*j}")
    a("s_waitcnt lgkmcnt(0)")
    SR = [S01, S01+4, KR, KR+4]
    for T in range(4):
        a(f"s_waitcnt vmcnt({16 + 12 - 4*T})")
        for j in range(4):
            c = "0" if j == 0 else vr(SR[T], 4)
            a(f"v_mfma_f32_16x16x32_bf16 {vr(SR[T],4)}, {vr(KR+(T*4+j)*4,4)}, {vr(QB+4*j,4)}, {c}")
    a.nop(8)
    sreg = [SR[T]+r for T in range(4) for r in range(4)]
    a(f"s_mov_b32 s{S_TMP}, 0x3db504f3\ns_mov_b32 s{S_TMP2}, 0x3fb8aa3b")
    for i in range(0, 16, 2):
        x, y = sreg[i], sreg[i+1]
        a(f"v_cvt_pk_bf16_f32 v12, v{x}, v{y}\nv_lshlrev_b32 v{x}, 16, v12\nv_and_b32 v{y}, 0xffff0000, v12")
        a(f"v_mul_f32 v{x}, s{S_TMP}, v{x}\nv_mul_f32 v{y}, s{S_TMP}, v{y}")
        a(f"v_cvt_pk_bf16_f32 v12, v{x}, v{y}\nv_lshlrev_b32 v{x}, 16, v12\nv_and_b32 v{y}, 0xffff0000, v12")
    a(f"v_max3_f32 v12, v{sreg[0]}, v{sreg[1]}, v{sreg[2]}")
    for i in range(3, 15, 2):
        a(f"v_max3_f32 v12, v12, v{sreg[i]}, v{sreg[i+1]}")
    a(f"v_max_f32 v12, v12, v{sreg[15]}")
    for sw in ("v_permlane16_swap_b32", "v_permlane32_swap_b32"):
        a("v_mov_b32 v13, v12")
        a.nop(2)
        a(f"{sw} v12, v13")
        a.nop(1)
        a("v_max_f32 v12, v12, v13")
    a(f"v_mul_f32 v12, s{S_TMP2}, v12")
    for r in sreg:
        a(f"v_fma_f32 v{r}, v{r}, s{S_TMP2}, -v12")
    for r in sreg:
        a(f"v_exp_f32 v{r}, v{r}")
    a.nop(1)
    a(f"v_add_f32 v13, v{sreg[0]}, v{sreg[1]}")
    for r in sreg[2:]:
        a(f"v_add_f32 v13, v13, v{r}")
    AP = [24+4*i for i in range(14)] + [QB, QB+4]
    for i, r in enumerate(sreg):
        a(f"v_cvt_pk_bf16_f32 v14, v{r}, v{r}")
        for u in range(4):
            a(f"v_and_b32 v{AP[i]+u}, v14, v{8+u}")
    for sw in ("v_permlane16_swap_b32", "v_permlane32_swap_b32"):
        a("v_mov_b32 v14, v13")
        a.nop(2)
        a(f"{sw} v13, v14")
        a.nop(1)
        a("v_add_f32 v13, v13, v14")
    a(f"v_bfe_u32 v14, v0, 3, 1\nv_lshlrev_b32 v14, 3, v14\ns_lshl_b32 s{S_TMP}, s{S_B0}, 4\nv_add_u32 v14, s{S_TMP}, v14")
    a("s_mov_b64 exec, 0x101")
    a(f"ds_write_b64 v14, v[12:13] offset:{STL}")
    a("s_mov_b64 exec, -1")
    OACC = [QB+8, QB+12]
    stamp_a0(a, 11)
    for i in range(16):
        a(f"s_waitcnt vmcnt({15-i})")
        c = "0" if i < 2 else vr(OACC[i & 1], 4)
        a(f"v_mfma_f32_16x16x32_bf16 {vr(OACC[i&1],4)}, {vr(AP[i],4)}, {vr(VRG+4*i,4)}, {c}")
    a(f"v_lshrrev_b32 v14, 5, v0\nv_lshlrev_b32 v14, 9, v14\nv_lshl_add_u32 v14, v3, 5, v14\nv_and_b32 v15, 1, v4\nv_lshl_add_u32 v14, v15, 4, v14\ns_lshl_b32 s{S_TMP}, s{S_B0}, 10\nv_add_u32 v14, s{S_TMP}, v14")
    a.nop(3)
    for k in range(4):
        a(f"v_add_f32 v{16+k}, v{OACC[0]+k}, v{OACC[1]+k}")
    a(f"ds_write_b128 v14, v[16:19] offset:{OB}")
    stamp_a0(a, 12)
    a(f"s_lshl_b32 s{S_TMP}, s{S_B1}, 2\nv_mov_b32 v15, s{S_TMP}")
    a("s_mov_b64 exec, 1")
    a(f"ds_add_rtn_u32 v14, v15, v2 offset:{F_CB0}")
    a("s_mov_b64 exec, -1")
    a("s_waitcnt lgkmcnt(0)")
    a(f"v_readfirstlane_b32 s{S_TMP}, v14")
    a(f"s_cmp_eq_u32 s{S_TMP}, 3\ns_cbranch_scc0 L_att_done")
    a(f"v_lshrrev_b32 v14, 5, v0\nv_lshlrev_b32 v15, 3, v14\ns_lshl_b32 s{S_TMP}, s{S_B1}, 4\nv_add_u32 v15, s{S_TMP}, v15")
    for wi in range(4):
        a(f"ds_read_b64 {vr(16+2*wi,2)}, v15 offset:{STL+32*wi}")
    a(f"v_lshlrev_b32 v15, 9, v14\nv_and_b32 v13, 31, v0\nv_lshl_add_u32 v15, v13, 4, v15\ns_lshl_b32 s{S_TMP}, s{S_B1}, 10\nv_add_u32 v15, s{S_TMP}, v15")
    for wi in range(4):
        a(f"ds_read_b128 {vr(24+4*wi,4)}, v15 offset:{OB+2048*wi}")
    a("s_waitcnt lgkmcnt(4)")
    a("v_max3_f32 v40, v16, v18, v20\nv_max_f32 v40, v40, v22")
    for wi in range(4):
        a(f"v_sub_f32 v{16+2*wi}, v{16+2*wi}, v40")
    for wi in range(4):
        a(f"v_exp_f32 v{16+2*wi}, v{16+2*wi}")
    a.nop(1)
    a("v_mul_f32 v41, v16, v17\nv_fmac_f32 v41, v18, v19\nv_fmac_f32 v41, v20, v21\nv_fmac_f32 v41, v22, v23")
    a("s_waitcnt lgkmcnt(0)")
    for k in range(4):
        a(f"v_mul_f32 v{44+k}, v16, v{24+k}")
        for wi in range(1, 4):
            a(f"v_fmac_f32 v{44+k}, v{16+2*wi}, v{24+4*wi+k}")
    for k in range(4):
        a(f"v_min_u32 v{44+k}, s{S_C1}, v{44+k}")
    a(f"v_min_u32 v40, s{S_C1}, v40\nv_min_u32 v41, s{S_C1}, v41")
    a("v_lshlrev_b32 v15, 13, v4\nv_lshl_add_u32 v15, v3, 4, v15")
    a(f"s_lshl_b32 s{S_C2}, s{S_KVH}, 15\ns_lshl_b32 s{S_TMP}, s{S_SPL}, 9\ns_add_u32 s{S_C2}, s{S_C2}, s{S_TMP}\ns_lshl_b32 s{S_TMP}, s{S_B1}, 8\ns_add_u32 s{S_C2}, s{S_C2}, s{S_TMP}\ns_add_u32 s{S_C2}, s{S_C2}, {OP}")
    a(f"buffer_store_dwordx4 v[44:47], v15, {S(SWS)}, s{S_C2} offen sc1")
    a("v_lshlrev_b32 v15, 8, v14")
    a(f"s_lshl_b32 s{S_C2}, s{S_KVH}, 9\ns_lshl_b32 s{S_TMP}, s{S_SPL}, 4\ns_add_u32 s{S_C2}, s{S_C2}, s{S_TMP}\ns_lshl_b32 s{S_TMP}, s{S_B1}, 3\ns_add_u32 s{S_C2}, s{S_C2}, s{S_TMP}\ns_add_u32 s{S_C2}, s{S_C2}, {ST}")
    a("s_mov_b32 exec_lo, 1\ns_mov_b32 exec_hi, 1")
    a(f"buffer_store_dwordx2 v[40:41], v15, {S(SWS)}, s{S_C2} offen sc1")
    a("s_mov_b64 exec, -1")
    lds_inc(a, F_PUB, 1, 2)
    stamp(a, 8)
    a.lab("L_att_done")
    a(f"s_cmp_eq_u32 s{S_B0}, 0\ns_cbranch_scc0 L_end")
    a(f"s_cmp_eq_u32 s{S_ROLE}, 1\ns_cbranch_scc0 L_end")
    g = a.new("G"); gd = a.new("GD")
    a(f"s_lshr_b32 s{S_B2}, s{S_RIDX}, 2\ns_lshl_b32 s{S_B2}, s{S_B2}, 4\ns_mov_b32 s{S_CNT}, 0")
    a.lab(g)
    a(f"buffer_load_dword v16, v1, {S(SDBG)}, s{S_B2} offen sc1")
    a("s_waitcnt vmcnt(0)")
    a(f"v_readfirstlane_b32 s{S_TMP}, v16")
    a(f"s_cmp_eq_u32 s{S_TMP}, 16\ns_cbranch_scc1 {gd}")
    a(f"s_add_u32 s{S_CNT}, s{S_CNT}, 1\ns_cmp_gt_u32 s{S_CNT}, {SPIN_LIMIT}\ns_cbranch_scc1 {gd}")
    a(f"s_sleep 8\ns_branch {g}")
    a.lab(gd)
    a(f"s_lshr_b32 s{S_TMP}, s{S_RIDX}, 1\ns_lshl_b32 s{S_B2}, s{S_TMP}, 8\ns_add_u32 s{S_B2}, s{S_B2}, {ST}")
    a(f"s_lshl_b32 s{S_C2}, s{S_RIDX}, 13\ns_add_u32 s{S_C2}, s{S_C2}, {OP}")
    a("v_and_b32 v13, 31, v0\nv_lshlrev_b32 v13, 3, v13")
    a("v_lshlrev_b32 v14, 3, v4")
    a("v_lshlrev_b32 v15, 4, v0")
    if OPRE:
        pl = a.new("Q"); pd = a.new("QD")
        a(f"s_add_u32 s{S_FP}, s{P_WS}, s{S_B2}\ns_addc_u32 s{S_FP+1}, s{P_WS+1}, 0\ns_mov_b32 s{S_CNT}, 0")
        a.lab(pl)
        for hf in range(4):
            a(f"s_load_dwordx16 s[36:51], s[{S_FP}:{S_FP+1}], {64*hf} glc")
            a("s_waitcnt lgkmcnt(0)")
            for k in range(1, 16): a(f"s_max_u32 s36, s36, s{36+k}")
            a(f"s_cmp_eq_u32 s36, -1\ns_cbranch_scc1 {pl}_r")
        a(f"s_branch {pd}")
        a.lab(pl + "_r")
        a(f"s_add_u32 s{S_CNT}, s{S_CNT}, 1\ns_cmp_gt_u32 s{S_CNT}, 200\ns_cbranch_scc1 {pd}")
        a(f"s_sleep 1\ns_branch {pl}")
        a.lab(pd)
    else:
        def ld0():
            a(f"buffer_load_dwordx2 v[16:17], v13, {S(SWS)}, s{S_B2} offen sc1")
        poll_loop(a, ld0, [16, 17], 12, sleep=2)
    def ld1():
        for t in range(8):
            a(f"buffer_load_dwordx2 {vr(16+2*t,2)}, v14, {S(SWS)}, s{S_B2} offen offset:{32*t} sc1")
        for t in range(8):
            if t % 4 == 0: a(f"s_add_u32 s{S_TMP}, s{S_C2}, {t*1024}")
            a(f"buffer_load_dwordx4 {vr(32+4*t,4)}, v15, {S(SWS)}, s{S_TMP} offen offset:{(t%4)*1024} sc1")
    poll_loop(a, ld1, range(16, 64), 12, sleep=1)
    a("v_max3_f32 v12, v16, v18, v20\nv_max3_f32 v12, v12, v22, v24\nv_max3_f32 v12, v12, v26, v28\nv_max_f32 v12, v12, v30")
    a("v_mov_b32 v13, v12")
    a.nop(2)
    a("v_permlane32_swap_b32 v12, v13")
    a.nop(1)
    a("v_max_f32 v12, v12, v13")
    for t in range(8): a(f"v_sub_f32 v{16+2*t}, v{16+2*t}, v12")
    for t in range(8): a(f"v_exp_f32 v{16+2*t}, v{16+2*t}")
    a.nop(1)
    a("v_mul_f32 v64, v16, v17")
    for t in range(1, 8): a(f"v_fmac_f32 v64, v{16+2*t}, v{17+2*t}")
    for k in range(4):
        a(f"v_mul_f32 v{65+k}, v16, v{32+k}")
        for t in range(1, 8): a(f"v_fmac_f32 v{65+k}, v{16+2*t}, v{32+4*t+k}")
    for k in range(5): a(f"v_mov_b32 v{70+k}, v{64+k}")
    a.nop(2)
    for k in range(5): a(f"v_permlane32_swap_b32 v{64+k}, v{70+k}")
    a.nop(1)
    for k in range(5): a(f"v_add_f32 v{64+k}, v{64+k}, v{70+k}")
    a("v_rcp_f32 v64, v64\ns_nop 0")
    for k in range(4): a(f"v_mul_f32 v{65+k}, v64, v{65+k}")
    a("v_cvt_pk_bf16_f32 v66, v65, v66\nv_cvt_pk_bf16_f32 v67, v67, v68")
    a("v_and_b32 v13, 31, v0\nv_lshlrev_b32 v13, 3, v13")
    a(f"ds_write_b64 v13, v[66:67] offset:{OL}")
    a("s_waitcnt lgkmcnt(0)")
    lds_inc(a, F_O, 1, 2)
    stamp(a, 9)
    a.lab("L_end")
    a("s_endpgm")
    out += a.L
    out.append(f""".section .rodata,"a"
.p2align 6
.amdhsa_kernel {KN}
  .amdhsa_next_free_vgpr 168
  .amdhsa_next_free_sgpr 102
  .amdhsa_accum_offset 168
  .amdhsa_group_segment_fixed_size 0
  .amdhsa_kernarg_size 104
  .amdhsa_user_sgpr_count 2
  .amdhsa_user_sgpr_kernarg_segment_ptr 1
  .amdhsa_system_sgpr_workgroup_id_x 1
.end_amdhsa_kernel""")
    return "\n".join(out) + "\n"

if __name__ == "__main__":
    if len(sys.argv) > 2 and sys.argv[2] == "stamps": STAMPS = True
    for kv in sys.argv[3:]:
        k, v = kv.split("="); globals()[k] = int(v)
    if len(sys.argv) > 2 and sys.argv[2] == "diag": DIAG = True
    if len(sys.argv) > 2 and sys.argv[2] == "diag2": DIAG2 = True
    open(sys.argv[1], "w").write(gen())
```

```python
import sys

KN = "gated_mix__gqa_block_cached__swiglu_ffn__decode_kernel"
STAMPS = False

QP = 0x1A0000
GUP = 0x1E0000
OP = 0x10000
ST = 0x90000
FP = 0xA0000
NPROD = 208
NB = 0x190000
STAMPO = 0x8000000
F_INIT, F_Q, F_GO, F_CB0, F_CB1, F_GU, F_O, F_RED, F_GATE = 0, 4, 8, 12, 16, 20, 24, 28, 32
F_PUB = 36
F_H = 40
F_GI = 44
QL = 0x100
STL = 0x500
OB = 0x800
GUL = 0x2800
HL = 0x3800
OL = 0x3A00
REDL = 0x3B00
GATEL = 0x3D00
LDS_BYTES = 0x4000
SPIN_LIMIT = 400000

class A:
    def __init__(s): s.L = []; s.n = 0
    def __call__(s, t):
        for l in t.strip("\n").split("\n"): s.L.append("    " + l.strip())
    def lab(s, l): s.L.append(l + ":")
    def new(s, p="L"):
        s.n += 1; return f"{p}_{s.n}"
    def nop(s, k):
        while k > 0:
            c = min(k, 16); s(f"s_nop {c-1}"); k -= c

def vr(b, n=1): return f"v{b}" if n == 1 else f"v[{b}:{b+n-1}]"

def srd(a, q, lo, nbytes):
    a(f"s_mov_b32 s{q}, s{lo}\ns_mov_b32 s{q+1}, s{lo+1}\ns_mov_b32 s{q+2}, {nbytes}\ns_mov_b32 s{q+3}, 0x20000")

P_X, P_K, P_V, P_WQ, P_WO, P_BX, P_WG, P_WU = 36, 38, 40, 42, 44, 46, 48, 50
P_WD, P_GW, P_OUT, P_DBG, P_WS = 52, 54, 56, 58, 60
SX, SWS, SA, SB, SC, SDBG, SOUT = 8, 12, 16, 20, 24, 28, 32
def S(q): return f"s[{q}:{q+3}]"
S_WAVE = 3; S_U = 4; S_T = 5; S_TMP = 6; S_TMP2 = 7
S_ROLE = 62
S_RIDX = 63
S_PROD = 64
S_CNT = 65
S_B0 = 66; S_B1 = 67; S_B2 = 68; S_B3 = 69
S_EX = 70
S_EX2 = 72
S_SELLO = 74; S_SELHI = 75
S_KVH = 76; S_SPL = 77
S_C1 = 78; S_C2 = 79
S_ST0 = 80
S_FP = 88; S_FV = 92; S_CBQ = 90
S_LM = 82; S_PM = 84
S_STR = 96; S_JB = 97; S_JO = 98; S_JBS = 99; S_JX = 100; S_J56 = 91
POLL0 = 32
WIN = 0
WINF = 8
GOF = 1
LATE = 0
LATEN = 8
HSLEEP = 16
WOW = 0
WDW = 0
OPRE0 = 0
QROT = 0
GROT = 0
SPREAD = 0
BARN = 0
X1EARLY = 0
OPRE = 0
QPRE = 1
KHOLD = 16
GISPIN = 40
PRE = 0
PREW = 0

DIAG = False
DIAG2 = False
def stamp(a, idx):
    if DIAG:
        a(f"s_memrealtime s[{S_ST0+2*0}:{S_ST0+1}]")
        a("s_waitcnt lgkmcnt(0)")
        if idx == 0: a(f"s_not_b32 s{S_ST0}, s{S_ST0}")
        a(f"v_mov_b32 v14, s{S_ST0}")
        a("v_mov_b32 v15, 0")
        a(f"s_mov_b64 s[86:87], exec")
        a("s_mov_b64 exec, 1")
        a(f"buffer_atomic_umax v14, v15, {S(SDBG)}, 0 offen offset:{4*idx}")
        a(f"s_mov_b64 exec, s[86:87]")
    elif STAMPS or DIAG2:
        a(f"s_memrealtime s[{S_ST0+2*0}:{S_ST0+1}]")
        a("s_waitcnt lgkmcnt(0)")
        a(f"v_mov_b32 v14, s{S_ST0}")
        a(f"s_lshl_b32 s101, s2, 6")
        a(f"s_add_u32 s101, s101, {STAMPO + 4*idx}")
        a("v_mov_b32 v15, 0")
        a(f"s_mov_b64 s[86:87], exec")
        a("s_mov_b64 exec, 1")
        a(f"buffer_store_dword v14, v15, {S(SWS)}, s101 offen sc1")
        a(f"s_mov_b64 exec, s[86:87]")

def stamp_a0(a, idx):
    if STAMPS:
        l = a.new()
        a(f"s_cmp_eq_u32 s{S_B0}, 7\ns_cbranch_scc0 {l}")
        stamp(a, idx)
        a.lab(l)

def stamp_w(a, idx, w=1):
    if STAMPS:
        l = a.new()
        a(f"s_cmp_eq_u32 s{S_WAVE}, {w}\ns_cbranch_scc0 {l}")
        stamp(a, idx)
        a.lab(l)

def wait_lds(a, flag, target, vz, vt, limit=None):
    l = a.new("W"); d = a.new("WD")
    a(f"s_mov_b32 s{S_CNT}, 0")
    a.lab(l)
    a(f"ds_read_b32 v{vt}, v{vz} offset:{flag}")
    a("s_waitcnt lgkmcnt(0)")
    a(f"v_readfirstlane_b32 s{S_TMP}, v{vt}")
    a(f"s_cmp_ge_u32 s{S_TMP}, {target}")
    a(f"s_cbranch_scc1 {d}")
    a(f"s_add_u32 s{S_CNT}, s{S_CNT}, 1")
    a(f"s_cmp_gt_u32 s{S_CNT}, {SPIN_LIMIT if limit is None else limit}")
    a(f"s_cbranch_scc1 {d}")
    a("s_sleep 1")
    a(f"s_branch {l}")
    a.lab(d)

def group_flag_wait(a, want, first_sleep, sleep):
    l = a.new("G"); d = a.new("GD"); lv = a.new("GV"); lc = a.new("GC")
    a(f"s_mov_b32 s{S_CNT}, 0\ns_lshl_b32 s{S_B2}, s{S_KVH}, 4\ns_mov_b32 s{S_TMP2}, {want}")
    a(f"s_add_u32 s{S_FP}, s{P_DBG}, s{S_B2}\ns_addc_u32 s{S_FP+1}, s{P_DBG+1}, 0")
    if first_sleep: a(f"s_sleep {first_sleep}")
    a.lab(l)
    a(f"s_cmp_gt_u32 s{S_CNT}, 32\ns_cbranch_scc1 {lv}")
    a(f"s_load_dwordx4 s[{S_FV}:{S_FV+3}], s[{S_FP}:{S_FP+1}], 0 glc")
    a("s_waitcnt lgkmcnt(0)")
    a(f"s_and_b32 s{S_FV}, s{S_FV}, s{S_FV+1}\ns_and_b32 s{S_FV+2}, s{S_FV+2}, s{S_FV+3}\ns_and_b32 s{S_TMP}, s{S_FV}, s{S_FV+2}")
    a(f"s_branch {lc}")
    a.lab(lv)
    a(f"buffer_load_dwordx4 v[16:19], v1, {S(SDBG)}, s{S_B2} offen sc1")
    a("s_waitcnt vmcnt(0)")
    a("v_and_b32 v16, v16, v17\nv_and_b32 v18, v18, v19\nv_and_b32 v16, v16, v18\ns_nop 0")
    a(f"v_readfirstlane_b32 s{S_TMP}, v16")
    a.lab(lc)
    a(f"s_and_b32 s{S_TMP}, s{S_TMP}, s{S_TMP2}")
    a(f"s_cmp_eq_u32 s{S_TMP}, s{S_TMP2}\ns_cbranch_scc1 {d}")
    a(f"s_add_u32 s{S_CNT}, s{S_CNT}, 1\ns_cmp_gt_u32 s{S_CNT}, {SPIN_LIMIT}\ns_cbranch_scc1 {d}")
    a(f"s_sleep {sleep}\ns_branch {l}")
    a.lab(d)

def lds_inc(a, flag, vz, vone):
    a(f"s_mov_b64 s[{S_EX}:{S_EX+1}], exec\ns_mov_b64 exec, 1")
    a(f"ds_add_u32 v{vz}, v{vone} offset:{flag}")
    a(f"s_mov_b64 exec, s[{S_EX}:{S_EX+1}]")

def umax_chain(a, dst, regs):
    regs = list(regs)
    if len(regs) == 1:
        a(f"v_mov_b32 v{dst}, v{regs[0]}"); return
    if len(regs) == 2:
        a(f"v_max_u32 v{dst}, v{regs[0]}, v{regs[1]}"); return
    a(f"v_max3_u32 v{dst}, v{regs[0]}, v{regs[1]}, v{regs[2]}")
    i = 3
    while i < len(regs):
        if i + 1 < len(regs):
            a(f"v_max3_u32 v{dst}, v{dst}, v{regs[i]}, v{regs[i+1]}"); i += 2
        else:
            a(f"v_max_u32 v{dst}, v{dst}, v{regs[i]}"); i += 1

def poll_loop(a, emit_loads, regs, vt, sleep=2):
    l = a.new("P"); d = a.new("PD")
    a(f"s_mov_b32 s{S_CNT}, 0")
    a.lab(l)
    emit_loads()
    a("s_waitcnt vmcnt(0)")
    umax_chain(a, vt, regs)
    a(f"v_cmp_eq_u32 vcc, -1, v{vt}")
    a(f"s_cbranch_vccz {d}")
    a(f"s_add_u32 s{S_CNT}, s{S_CNT}, 1")
    a(f"s_cmp_gt_u32 s{S_CNT}, {SPIN_LIMIT}")
    a(f"s_cbranch_scc1 {d}")
    a(f"s_sleep {sleep}")
    a(f"s_branch {l}")
    a.lab(d)

def job_params_q(a):
    srd(a, SA, P_WQ, 576*8192)
    a(f"s_mov_b32 s{S_STR}, 8192\ns_and_b32 s{S_TMP}, s2, 7")
    a(f"s_mul_i32 s{S_JX}, s{S_TMP}, 144\ns_mul_i32 s{S_JB}, s{S_TMP}, {72*8192}")
    a(f"s_lshl_b32 s{S_JO}, s{S_TMP}, 15\ns_lshr_b32 s{S_TMP}, s2, 3")
    a(f"s_lshl_b32 s{S_TMP2}, s{S_TMP}, 8\ns_add_u32 s{S_JB}, s{S_JB}, s{S_TMP2}")
    a(f"s_lshl_b32 s{S_TMP2}, s{S_TMP}, 9\ns_add_u32 s{S_JO}, s{S_JO}, s{S_TMP2}\ns_add_u32 s{S_JO}, s{S_JO}, {QP}")
    a(f"s_mov_b32 s{S_JBS}, 16384")

def job_params_gu(a, sid, want_srd=True):
    lu = a.new(); lj = a.new()
    a(f"s_cmp_ge_u32 s{sid}, 288\ns_cbranch_scc1 {lu}")
    if want_srd: srd(a, SA, P_WG, 576*9216)
    a(f"s_mov_b32 s{S_JO}, {GUP}\ns_branch {lj}")
    a.lab(lu)
    if want_srd: srd(a, SA, P_WU, 576*9216)
    a(f"s_mov_b32 s{S_JO}, {GUP + 16*18432}\ns_sub_u32 s{sid}, s{sid}, 288")
    a.lab(lj)
    a(f"s_mov_b32 s{S_STR}, 9216\ns_and_b32 s{S_TMP}, s{sid}, 7")
    a(f"s_mul_i32 s{S_JX}, s{S_TMP}, 144\ns_mul_i32 s{S_JB}, s{S_TMP}, {72*9216}")
    a(f"s_mul_i32 s{S_TMP}, s{S_TMP}, {2*18432}\ns_add_u32 s{S_JO}, s{S_JO}, s{S_TMP}\ns_lshr_b32 s{S_TMP}, s{sid}, 3")
    a(f"s_lshl_b32 s{S_TMP2}, s{S_TMP}, 8\ns_add_u32 s{S_JB}, s{S_JB}, s{S_TMP2}")
    a(f"s_lshl_b32 s{S_TMP2}, s{S_TMP}, 9\ns_add_u32 s{S_JO}, s{S_JO}, s{S_TMP2}")
    a(f"s_mov_b32 s{S_JBS}, 18432")

def job_body(a):
    W = 16; XA = 140; ACC = 88; BT = 120; PK = 152; vO1, vO2 = 4, 5
    t1, t2, t3 = 7, 8, 9
    a(f"v_lshrrev_b32 v{t1}, 4, v0\nv_and_b32 v{t3}, 1, v0\nv_mul_u32_u24 v{t3}, 1152, v{t3}")
    a(f"v_lshl_add_u32 v{XA+9}, v{t1}, 4, v{t3}\nv_lshl_add_u32 v{t3}, v{t1}, 2, v{t3}")
    a(f"buffer_load_dwordx4 {vr(XA,4)}, v{XA+9}, {S(SX)}, s{S_JX} offen")
    a(f"buffer_load_dwordx4 {vr(XA+4,4)}, v{XA+9}, {S(SX)}, s{S_JX} offen offset:64")
    a(f"buffer_load_dword v{XA+8}, v{t3}, {S(SX)}, s{S_JX} offen offset:128")
    a(f"v_mul_lo_u32 v{vO2}, v{t1}, s{S_STR}\nv_and_b32 v{t3}, 15, v0\nv_lshlrev_b32 v{t2}, 4, v{t3}")
    a(f"v_lshl_add_u32 v{vO1}, v{vO2}, 3, v{t2}\nv_lshl_add_u32 v{vO2}, v{vO2}, 1, v{t2}")
    a(f"s_mul_i32 s{S_J56}, s{S_STR}, 25")
    for J in range(2):
        for j in range(8):
            a(f"buffer_load_dwordx4 {vr(W+(J*8+j)*4,4)}, v{vO1}, {S(SA)}, s{S_JB} offen nt")
            a(f"s_add_u32 s{S_JB}, s{S_JB}, s{S_J56 if j == 7 else S_STR}")
    for j in range(2):
        a(f"buffer_load_dwordx4 {vr(W+64+j*4,4)}, v{vO2}, {S(SA)}, s{S_JB} offen nt")
        if j == 0: a(f"s_add_u32 s{S_JB}, s{S_JB}, s{S_STR}")
    lb = a.new()
    a(f"s_cmp_lg_u32 s{S_C2}, 0\ns_cbranch_scc1 {lb}")
    a("s_barrier")
    a.lab(lb)
    a(f"v_lshlrev_b32 v{t1}, 5, v{t3}")
    for k in (9, 10, 11): a(f"v_mov_b32 v{BT+k}, 0")
    a(f"s_add_u32 s{S_JBS}, s{S_JBS}, s{S_JO}")
    a("s_waitcnt vmcnt(0)")
    for k in (9, 10, 11): a(f"v_mov_b32 v{XA+k}, 0")
    for e in range(8):
        u, p = e >> 1, e & 1
        sel = S_SELHI if p else S_SELLO
        acc = ACC + 4*e
        for J in range(2):
            for t in range(4):
                lo = W + (J*8 + 2*t)*4 + u; hi = W + (J*8 + 2*t + 1)*4 + u
                a(f"v_perm_b32 v{BT + J*4 + t}, v{hi}, v{lo}, s{sel}")
        a(f"v_perm_b32 v{BT+8}, v{W+68+u}, v{W+64+u}, s{sel}")
        a.nop(2)
        a(f"v_mfma_f32_16x16x32_bf16 {vr(acc,4)}, {vr(XA,4)}, {vr(BT,4)}, 0")
        a(f"v_mfma_f32_16x16x32_bf16 {vr(acc,4)}, {vr(XA+4,4)}, {vr(BT+4,4)}, {vr(acc,4)}")
        a(f"v_mfma_f32_16x16x32_bf16 {vr(acc,4)}, {vr(XA+8,4)}, {vr(BT+8,4)}, {vr(acc,4)}")
    wait_lds(a, F_INIT, 1, 1, 12)
    for b in range(2):
        for e in range(8):
            a(f"v_min_u32 v{PK+8*b+e}, s{S_C1}, v{ACC+4*e+b}")
    a("s_mov_b64 exec, 0xffff")
    for b in range(2):
        so = S_JBS if b else S_JO
        a(f"buffer_store_dwordx4 {vr(PK+8*b,4)}, v{t1}, {S(SWS)}, s{so} offen sc1")
        a(f"buffer_store_dwordx4 {vr(PK+8*b+4,4)}, v{t1}, {S(SWS)}, s{so} offen offset:16 sc1")
    a("s_mov_b64 exec, -1")

def all_groups_wait(a, vt):
    l = a.new("G"); d = a.new("GD")
    a(f"s_mov_b32 s{S_CNT}, 0\nv_and_b32 v{vt}, 15, v0\nv_lshlrev_b32 v{vt}, 4, v{vt}\ns_mov_b32 s{S_TMP2}, 16")
    a.lab(l)
    a(f"buffer_load_dword v16, v{vt}, {S(SDBG)}, 0 offen sc1")
    a("s_waitcnt vmcnt(0)")
    a(f"v_cmp_gt_u32 vcc, s{S_TMP2}, v16")
    a(f"s_cbranch_vccz {d}")
    a(f"s_add_u32 s{S_CNT}, s{S_CNT}, 1\ns_cmp_gt_u32 s{S_CNT}, {SPIN_LIMIT}\ns_cbranch_scc1 {d}")
    a(f"s_sleep 16\ns_branch {l}")
    a.lab(d)

def cb_masks(a):
    a(f"s_cmp_eq_u32 s{S_WAVE}, 4")
    a(f"s_cselect_b32 s{S_LM}, 0x00ff00ff, -1\ns_mov_b32 s{S_LM+1}, s{S_LM}")
    a(f"s_mov_b32 s{S_PM}, 0xffff\ns_cselect_b32 s{S_PM}, 0xff, s{S_PM}\ns_mov_b32 s{S_PM+1}, 0")

def wide_perm(a, W, P):
    for e in range(8):
        u, p = e >> 1, e & 1
        sel = S_SELHI if p else S_SELLO
        for t in range(4):
            a(f"v_perm_b32 v{P+4*e+t}, v{W+(2*t+1)*4+u}, v{W+(2*t)*4+u}, s{sel}")

def wide_loads(a, srdq, sbase, W, vO, pre=99, hook=None, win=0, n0=0):
    for j in range(8):
        if j == pre: hook()
        if win and n0 + j >= win: a(f"s_waitcnt vmcnt({win-1})")
        a(f"s_add_u32 s{S_TMP}, s{sbase}, {j*1152}")
        a(f"buffer_load_dwordx4 {vr(W+4*j,4)}, v{vO}, {S(srdq)}, s{S_TMP} offen nt")

def wide_compute(a, units, ACC, BT, nk=8):
    for e in range(8):
        u, p = e >> 1, e & 1
        sel = S_SELHI if p else S_SELLO
        for ui, (W, Aop) in enumerate(units):
            bt = BT + ((e*len(units) + ui) & 1)*4
            for t in range(nk//2):
                lo = W + (2*t)*4 + u; hi = W + (2*t+1)*4 + u
                a(f"v_perm_b32 v{bt+t}, v{hi}, v{lo}, s{sel}")
            a.nop(2)
            c = "0" if ui == 0 else vr(ACC+4*e, 4)
            if nk == 8:
                a(f"v_mfma_f32_16x16x32_bf16 {vr(ACC+4*e,4)}, {vr(Aop,4)}, {vr(bt,4)}, {c}")
            else:
                a(f"v_mfma_f32_16x16x16_bf16 {vr(ACC+4*e,4)}, {vr(Aop,2)}, {vr(bt,2)}, {c}")

def wide_publish(a, ACC, PK, vFO, cb, nlanes_mask):
    for b in range(2):
        for e in range(8):
            a(f"v_min_u32 v{PK+8*b+e}, s{S_C1}, v{ACC+4*e+b}")
    a(f"s_mov_b64 exec, {nlanes_mask}")
    for b in range(2):
        a(f"s_add_u32 s{S_TMP}, s{S_B3}, {(b*18 + 4*cb)*NPROD*128}")
        a(f"buffer_store_dwordx4 {vr(PK+8*b,4)}, v{vFO}, {S(SWS)}, s{S_TMP} offen sc1")
        a(f"buffer_store_dwordx4 {vr(PK+8*b+4,4)}, v{vFO}, {S(SWS)}, s{S_TMP} offen offset:16 sc1")
    a("s_mov_b64 exec, -1")

def rho_sum(a, ACC, T):
    regs = [ACC+4*e+b for e in range(8) for b in range(2)]
    for i, r in enumerate(regs): a(f"v_mov_b32 v{T+i}, v{r}")
    a.nop(2)
    for i, r in enumerate(regs): a(f"v_permlane16_swap_b32 v{r}, v{T+i}")
    a.nop(2)
    for i, r in enumerate(regs): a(f"v_add_f32_dpp v{r}, v{T+i}, v{r} row_ror:8 row_mask:0xf bank_mask:0xf")

def gen():
    a = A()
    hdr = open("gated_mix__gqa_block_cached__swiglu_ffn__decode.s.ref").read().split("\n")
    pre = [l for l in hdr if l.startswith(";") and "@launch" not in l]
    out = pre + [f"; @launch grid=(256,1,1) block=(768,1,1) lds={LDS_BYTES}",
                 '.amdgcn_target "amdgcn-amd-amdhsa--gfx950"', ".text", f".globl {KN}", ".p2align 8",
                 f".type {KN},@function", f"{KN}:"]
    a("s_cmp_ge_u32 s2, 256\ns_cbranch_scc1 L_end")
    a("s_load_dwordx16 s[36:51], s[0:1], 0\ns_load_dwordx8 s[52:59], s[0:1], 64\ns_load_dwordx2 s[60:61], s[0:1], 96")
    a("v_lshrrev_b32 v1, 6, v0\nv_and_b32 v0, 63, v0\ns_nop 0")
    a(f"v_readfirstlane_b32 s{S_WAVE}, v1")
    a("v_mov_b32 v1, 0\nv_mov_b32 v2, 1")
    a(f"s_and_b32 s{S_U}, s2, 7\ns_lshr_b32 s{S_T}, s2, 3")
    a(f"s_lshr_b32 s{S_KVH}, s2, 4\ns_and_b32 s{S_SPL}, s2, 15")
    a(f"s_bfe_u32 s{S_CBQ}, s2, 0x20001\ns_lshl_b32 s{S_CBQ}, s{S_CBQ}, 1\ns_bfe_u32 s{S_TMP}, s2, 0x10003\ns_add_u32 s{S_CBQ}, s{S_CBQ}, s{S_TMP}\ns_lshl_b32 s{S_TMP}, s{S_KVH}, 3\ns_add_u32 s{S_CBQ}, s{S_CBQ}, s{S_TMP}")
    a(f"s_mov_b32 s{S_SELLO}, 0x05040100\ns_mov_b32 s{S_SELHI}, 0x07060302\ns_mov_b32 s{S_C1}, 0xfffffffe")
    l1 = a.new(); l2 = a.new(); l3 = a.new()
    a(f"s_cmp_lt_u32 s{S_T}, 18\ns_cbranch_scc0 {l1}")
    a(f"s_mov_b32 s{S_ROLE}, 0\ns_mul_i32 s{S_RIDX}, s{S_U}, 18\ns_add_u32 s{S_RIDX}, s{S_RIDX}, s{S_T}\ns_add_u32 s{S_PROD}, s{S_RIDX}, 64\ns_branch {l3}")
    a.lab(l1)
    a(f"s_cmp_lt_u32 s{S_T}, 26\ns_cbranch_scc0 {l2}")
    a(f"s_mov_b32 s{S_ROLE}, 1\ns_lshl_b32 s{S_RIDX}, s{S_U}, 3\ns_add_u32 s{S_RIDX}, s{S_RIDX}, s{S_T}\ns_sub_u32 s{S_RIDX}, s{S_RIDX}, 18\ns_mov_b32 s{S_PROD}, s{S_RIDX}\ns_branch {l3}")
    a.lab(l2)
    a(f"s_sub_u32 s{S_RIDX}, s{S_T}, 26\ns_lshl_b32 s{S_RIDX}, s{S_RIDX}, 3\ns_add_u32 s{S_RIDX}, s{S_RIDX}, s{S_U}\ns_mov_b32 s{S_PROD}, 0")
    a(f"s_cmp_lt_u32 s{S_RIDX}, 36\ns_cselect_b32 s{S_ROLE}, 2, 3")
    a.lab(l3)
    a(f"s_lshl_b32 s{S_B3}, s{S_PROD}, 7\ns_add_u32 s{S_B3}, s{S_B3}, {FP}")
    a("s_waitcnt lgkmcnt(0)")
    srd(a, SX, P_X, 2304)
    srd(a, SWS, P_WS, 0x10000000)
    srd(a, SDBG, P_DBG, 256)
    a(f"s_cmp_ge_u32 s{S_WAVE}, 4\ns_cbranch_scc1 L_att")
    a(f"s_cmp_eq_u32 s{S_WAVE}, 1\ns_cbranch_scc1 L_x1")
    a("s_setprio 3")
    a(f"s_mov_b32 s{S_C2}, s{S_WAVE}")
    lg = a.new()
    a(f"s_cmp_eq_u32 s{S_WAVE}, 0\ns_cbranch_scc0 {lg}")
    job_params_q(a)
    a("s_branch L_job")
    a.lab(lg)
    a(f"s_sub_u32 s{S_B0}, s{S_WAVE}, 2\ns_lshl_b32 s{S_B0}, s{S_B0}, 8\ns_add_u32 s{S_B0}, s{S_B0}, s2")
    job_params_gu(a, S_B0)
    a("s_barrier")
    if LATE:
        a(f"s_cmp_eq_u32 s{S_WAVE}, 3\ns_cbranch_scc0 L_job")
        if LATE == 1: wait_lds(a, F_GO, LATEN, 1, 10)
        else: wait_lds(a, F_PUB, 2, 1, 10)
    a("s_branch L_job")

    a.lab("L_x1")
    a("s_setprio 3")
    stamp(a, 0)
    a("v_lshlrev_b32 v3, 2, v0")
    a("ds_write_b32 v3, v1")
    if X1EARLY: a("s_waitcnt lgkmcnt(0)\ns_barrier")
    a("v_mov_b32 v16, -1\nv_mov_b32 v17, -1\nv_mov_b32 v18, -1\nv_mov_b32 v19, -1")
    a("v_lshrrev_b32 v4, 5, v0\nv_and_b32 v5, 31, v0\nv_lshlrev_b32 v5, 4, v5")
    def slot_init():
        a(f"v_mul_lo_u32 v6, v4, s{S_JBS}\nv_add_u32 v6, v6, v5")
        a(f"buffer_store_dwordx4 v[16:19], v6, {S(SWS)}, s{S_JO} offen sc1")
    job_params_q(a)
    slot_init()
    for k in range(2):
        a(f"s_add_u32 s{S_B0}, s2, {256*k}")
        job_params_gu(a, S_B0, want_srd=False)
        slot_init()
    ls = a.new()
    a(f"s_cmp_ge_u32 s2, 64\ns_cbranch_scc1 {ls}")
    a(f"s_add_u32 s{S_B0}, s2, 512")
    job_params_gu(a, S_B0, want_srd=False)
    slot_init()
    a.lab(ls)
    a("v_lshrrev_b32 v9, 4, v0\nv_lshlrev_b32 v9, 13, v9\nv_and_b32 v10, 15, v0\nv_lshl_add_u32 v9, v10, 4, v9")
    a(f"s_lshl_b32 s{S_B2}, s{S_KVH}, 15\ns_lshl_b32 s{S_TMP}, s{S_SPL}, 9\ns_add_u32 s{S_B2}, s{S_B2}, s{S_TMP}\ns_add_u32 s{S_B2}, s{S_B2}, {OP}")
    a(f"buffer_store_dwordx4 v[16:19], v9, {S(SWS)}, s{S_B2} offen sc1")
    a(f"buffer_store_dwordx4 v[16:19], v9, {S(SWS)}, s{S_B2} offen offset:256 sc1")
    a("v_lshlrev_b32 v9, 8, v0")
    a(f"s_lshl_b32 s{S_B2}, s{S_KVH}, 9\ns_lshl_b32 s{S_TMP}, s{S_SPL}, 4\ns_add_u32 s{S_B2}, s{S_B2}, s{S_TMP}\ns_add_u32 s{S_B2}, s{S_B2}, {ST}")
    a("s_mov_b64 exec, 3")
    a(f"buffer_store_dwordx4 v[16:19], v9, {S(SWS)}, s{S_B2} offen sc1")
    a("s_mov_b64 exec, -1")
    lskip = a.new()
    a(f"s_cmp_gt_u32 s{S_ROLE}, 1\ns_cbranch_scc1 {lskip}")
    a(f"v_lshrrev_b32 v9, 3, v0\ns_mov_b32 s{S_TMP}, {NPROD*128}\nv_mul_lo_u32 v9, v9, s{S_TMP}\nv_and_b32 v10, 7, v0\nv_lshl_add_u32 v9, v10, 4, v9")
    for i in range(5):
        if i == 4: a("s_mov_b32 exec_lo, -1\ns_mov_b32 exec_hi, 0")
        a(f"s_add_u32 s{S_TMP}, s{S_B3}, {i*8*NPROD*128}")
        a(f"buffer_store_dwordx4 v[16:19], v9, {S(SWS)}, s{S_TMP} offen sc1")
    a("s_mov_b64 exec, -1")
    a.lab(lskip)
    a(f"s_lshl_b32 s{S_B2}, s2, 7\ns_add_u32 s{S_B2}, s{S_B2}, {NB}")
    a("s_mov_b64 exec, 1")
    a(f"buffer_store_dword v16, v1, {S(SWS)}, s{S_B2} offen sc1")
    a("s_mov_b64 exec, -1")
    if not X1EARLY: a("s_waitcnt lgkmcnt(0)\ns_barrier")
    a("s_waitcnt vmcnt(0)")
    lds_inc(a, F_INIT, 1, 2)
    a(f"s_lshl_b32 s{S_TMP}, s{S_KVH}, 4\ns_add_u32 s{S_FP}, s{P_DBG}, s{S_TMP}\ns_addc_u32 s{S_FP+1}, s{P_DBG+1}, 0")
    a(f"s_mov_b32 s{S_FV}, 1\ns_atomic_add s{S_FV}, s[{S_FP}:{S_FP+1}], 0 glc")
    a("s_waitcnt lgkmcnt(0)")
    ln = a.new(); d = a.new("GD"); l = a.new("G"); lv = a.new("GV"); lc = a.new("GC")
    a(f"s_and_b32 s{S_FV}, s{S_FV}, 15\ns_cmp_eq_u32 s{S_FV}, 15\ns_cbranch_scc0 {ln}")
    a(f"s_lshl_b32 s{S_TMP}, s{S_KVH}, 11\ns_add_u32 s{S_TMP}, s{S_TMP}, {NB}\ns_add_u32 s{S_FP}, s{P_WS}, s{S_TMP}\ns_addc_u32 s{S_FP+1}, s{P_WS+1}, 0\ns_mov_b32 s{S_FV}, 2")
    for k in range(16):
        a(f"s_atomic_add s{S_FV}, s[{S_FP}:{S_FP+1}], {128*k}")
    a(f"s_branch {d}")
    a.lab(ln)
    a(f"s_add_u32 s{S_FP}, s{P_WS}, s{S_B2}\ns_addc_u32 s{S_FP+1}, s{P_WS+1}, 0\ns_mov_b32 s{S_CNT}, 0")
    a.lab(l)
    a(f"s_cmp_gt_u32 s{S_CNT}, 64\ns_cbranch_scc1 {lv}")
    a(f"s_load_dword s{S_TMP}, s[{S_FP}:{S_FP+1}], 0 glc")
    a("s_waitcnt lgkmcnt(0)")
    a(f"s_branch {lc}")
    a.lab(lv)
    a(f"buffer_load_dword v9, v1, {S(SWS)}, s{S_B2} offen sc1")
    a("s_waitcnt vmcnt(0)")
    a(f"v_readfirstlane_b32 s{S_TMP}, v9")
    a.lab(lc)
    a(f"s_cmp_eq_u32 s{S_TMP}, 1\ns_cbranch_scc1 {d}")
    a(f"s_add_u32 s{S_CNT}, s{S_CNT}, 1\ns_cmp_gt_u32 s{S_CNT}, {SPIN_LIMIT}\ns_cbranch_scc1 {d}")
    a(f"s_sleep 2\ns_branch {l}")
    a.lab(d)
    stamp(a, 2)
    if QPRE:
        pl = a.new("Q"); pd = a.new("QD")
        a(f"s_lshl_b32 s{S_TMP}, s{S_KVH}, 10\ns_add_u32 s{S_TMP}, s{S_TMP}, {QP}\ns_add_u32 s{S_FP}, s{P_WS}, s{S_TMP}\ns_addc_u32 s{S_FP+1}, s{P_WS+1}, 0\ns_mov_b32 s{S_CNT}, 0")
        a.lab(pl)
        R = [36, 37, 38, 39, 40, 41, 42, 43, 46, 47, 92, 93, 94, 95, 86, 87]
        for ks in range(8):
            for c in range(2):
                a(f"s_load_dword s{R[ks*2+c]}, s[{S_FP}:{S_FP+1}], {ks*32768 + 16384 + c*512 + 508} glc")
        a("s_waitcnt lgkmcnt(0)")
        for k in range(1, 16): a(f"s_max_u32 s36, s36, s{R[k]}")
        a(f"s_cmp_lg_u32 s36, -1\ns_cbranch_scc1 {pd}")
        a(f"s_add_u32 s{S_CNT}, s{S_CNT}, 1\ns_cmp_gt_u32 s{S_CNT}, 40\ns_cbranch_scc1 {pd}")
        a(f"s_sleep 4\ns_branch {pl}")
        a.lab(pd)
    a("v_lshlrev_b32 v9, 4, v0")
    a(f"s_lshl_b32 s{S_B2}, s{S_KVH}, 10\ns_add_u32 s{S_B2}, s{S_B2}, {QP}")
    def ld():
        for ks in range(8):
            for b in range(2):
                a(f"s_add_u32 s{S_TMP}, s{S_B2}, {ks*32768 + b*16384}")
                a(f"buffer_load_dwordx4 {vr(16+(ks*2+b)*4,4)}, v9, {S(SWS)}, s{S_TMP} offen sc1")
        lds_inc(a, F_GI, 1, 2)
    poll_loop(a, ld, range(16, 80), 10, sleep=4)
    for st in (32, 16, 8):
        for r in range(16, 16 + st): a(f"v_add_f32 v{r}, v{r}, v{r+st}")
    for b in range(2):
        a(f"v_cvt_pk_bf16_f32 v{48+2*b}, v{16+b*4}, v{17+b*4}\nv_cvt_pk_bf16_f32 v{49+2*b}, v{18+b*4}, v{19+b*4}")
    a("v_lshlrev_b32 v9, 3, v0")
    a(f"ds_write_b64 v9, v[48:49] offset:{QL}\nds_write_b64 v9, v[50:51] offset:{QL+512}")
    a("s_waitcnt lgkmcnt(0)")
    lds_inc(a, F_Q, 1, 2)
    stamp(a, 3)
    a("s_branch L_aux2")
    a.lab("L_job")
    job_body(a)
    a(f"s_cmp_lg_u32 s{S_C2}, 0\ns_cbranch_scc1 L_aux2")
    stamp(a, 1)
    a("s_cmp_ge_u32 s2, 64\ns_cbranch_scc1 L_aux2")
    a(f"s_mov_b32 s{S_C2}, 1\ns_add_u32 s{S_B0}, s2, 512")
    job_params_gu(a, S_B0)
    a("s_branch L_job")

    a.lab("L_aux2")
    a("s_setprio 0")
    a(f"s_cmp_eq_u32 s{S_ROLE}, 0\ns_cbranch_scc1 L_ffn")
    a(f"s_cmp_eq_u32 s{S_ROLE}, 1\ns_cbranch_scc1 L_wo")
    a(f"s_cmp_eq_u32 s{S_ROLE}, 2\ns_cbranch_scc1 L_red0")
    a("s_endpgm")
    a.lab("L_red0")
    a(f"s_cmp_eq_u32 s{S_WAVE}, 3\ns_cbranch_scc0 L_red")
    srd(a, SA, P_GW, 1152)
    a("v_and_b32 v3, 31, v0\nv_mul_u32_u24 v3, 36, v3\nv_lshrrev_b32 v4, 5, v0\nv_mul_u32_u24 v4, 1152, v4\nv_add_u32 v4, v4, v3")
    for i in range(9):
        a(f"buffer_load_dword v{16+i}, v4, {S(SX)}, 0 offen offset:{4*i}")
        a(f"buffer_load_dword v{32+i}, v3, {S(SA)}, 0 offen offset:{4*i}")
    a("v_mov_b32 v5, 0\ns_waitcnt vmcnt(0)")
    for i in range(9):
        a(f"v_lshlrev_b32 v6, 16, v{16+i}\nv_and_b32 v7, 0xffff0000, v{16+i}\nv_lshlrev_b32 v8, 16, v{32+i}\nv_and_b32 v9, 0xffff0000, v{32+i}")
        a("v_mul_f32 v6, v6, v8\nv_mul_f32 v7, v7, v9\nv_cvt_pk_bf16_f32 v6, v6, v7")
        a("v_lshlrev_b32 v7, 16, v6\nv_and_b32 v6, 0xffff0000, v6\nv_add_f32 v5, v5, v7\nv_add_f32 v5, v5, v6")
    for k in (1, 2, 4, 8):
        a.nop(2)
        a(f"v_add_f32_dpp v5, v5, v5 row_ror:{k} row_mask:0xf bank_mask:0xf")
    a("v_mov_b32 v6, v5")
    a.nop(2)
    a("v_permlane16_swap_b32 v5, v6")
    a.nop(1)
    a("v_add_f32 v5, v5, v6")
    a("v_cvt_pk_bf16_f32 v5, v5, v5\nv_and_b32 v5, 0xffff0000, v5")
    a("v_mul_f32 v6, 0xbfb8aa3b, v5\nv_exp_f32 v6, v6\ns_nop 0\nv_add_f32 v6, 1.0, v6\nv_rcp_f32 v6, v6\ns_nop 0")
    a("v_cvt_pk_bf16_f32 v6, v6, v6\nv_and_b32 v6, 0xffff0000, v6")
    a("v_lshrrev_b32 v7, 5, v0\nv_lshlrev_b32 v7, 2, v7")
    a(f"ds_write_b32 v7, v6 offset:{GATEL}")
    a("s_waitcnt lgkmcnt(0)")
    lds_inc(a, F_GATE, 1, 2)
    a("s_branch L_red")

    a.lab("L_ffn")
    WD = 88; XA = 120
    vOW, vFO, vOH = 167, 164, 165
    def att_done():
        wait_lds(a, F_PUB, 2, 1, 10)
    lh = a.new()
    a(f"s_branch {lh}")
    a.lab("L_h")
    all_groups_wait(a, 9)
    a(f"v_lshrrev_b32 v9, 5, v0\ns_mov_b32 s{S_TMP}, 18432\nv_mul_lo_u32 v9, v9, s{S_TMP}\nv_and_b32 v10, 31, v0\nv_lshl_add_u32 v9, v10, 2, v9")
    a(f"s_lshl_b32 s{S_B2}, s{S_RIDX}, 7\ns_add_u32 s{S_B2}, s{S_B2}, {GUP}")
    def ldh():
        for k in range(16):
            a(f"s_add_u32 s{S_TMP}, s{S_B2}, {k*2*18432}")
            a(f"buffer_load_dword v{16+k}, v9, {S(SWS)}, s{S_TMP} offen sc1")
    poll_loop(a, ldh, range(16, 32), 10, sleep=HSLEEP)
    for base in (16, 24):
        for st in (4, 2, 1):
            for r in range(base, base + st): a(f"v_add_f32 v{r}, v{r}, v{r+st}")
    a("v_mov_b32 v20, v24")
    a("v_cvt_pk_bf16_f32 v16, v16, v20\nv_and_b32 v20, 0xffff0000, v16\nv_lshlrev_b32 v16, 16, v16")
    a("v_mul_f32 v17, 0xbfb8aa3b, v16\nv_exp_f32 v17, v17\ns_nop 0\nv_add_f32 v17, 1.0, v17\nv_rcp_f32 v17, v17\ns_nop 0\nv_mul_f32 v17, v16, v17")
    a("v_cvt_pk_bf16_f32 v17, v17, v17\nv_and_b32 v17, 0xffff0000, v17\nv_mul_f32 v17, v17, v20\nv_cvt_pk_bf16_f32 v17, v17, v17")
    a("v_lshlrev_b32 v7, 1, v0")
    a(f"ds_write_b16 v7, v17 offset:{HL}")
    a("s_waitcnt lgkmcnt(0)")
    lds_inc(a, F_H, 1, 2)
    stamp(a, 13)
    a("s_endpgm")
    a.lab(lh)
    srd(a, SB, P_WD, 4608*1152)
    a(f"v_lshrrev_b32 v7, 4, v0\nv_mul_u32_u24 v{vOW}, {8*1152}, v7\nv_and_b32 v8, 15, v0\nv_lshl_add_u32 v{vOW}, v8, 4, v{vOW}")
    cb_masks(a)
    a(f"v_bfe_u32 v7, v0, 2, 2\ns_mov_b32 s{S_TMP}, {NPROD*128}\nv_mul_lo_u32 v{vFO}, v7, s{S_TMP}\nv_and_b32 v8, 3, v0\nv_lshl_add_u32 v{vFO}, v8, 5, v{vFO}")
    a(f"s_mul_i32 s{S_B0}, s{S_RIDX}, {32*1152}")
    a(f"s_lshl_b32 s{S_TMP}, s{S_WAVE}, 8\ns_add_u32 s{S_B2}, s{S_B0}, s{S_TMP}")
    a(f"s_mul_i32 s{S_TMP2}, s{S_WAVE}, {4*NPROD*128}\ns_add_u32 s{S_B3}, s{S_B3}, s{S_TMP2}")
    a(f"v_and_b32 v8, 1, v0\nv_lshlrev_b32 v8, 6, v8\nv_lshrrev_b32 v9, 4, v0\nv_lshl_add_u32 v11, v9, 4, v8")
    if GOF == 0: wait_lds(a, F_GO, 8, 1, 10)
    else: att_done()
    stamp(a, 4)
    a(f"s_mov_b64 exec, s[{S_LM}:{S_LM+1}]")
    wide_loads(a, SB, S_B2, WD, vOW, win=WDW)
    a("s_mov_b64 exec, -1")
    ACCW = 16; PK = 48; P0 = 128
    a("s_waitcnt vmcnt(0)")
    wide_perm(a, WD, P0)
    wait_lds(a, F_H, 1, 1, 10)
    a(f"ds_read_b128 {vr(XA,4)}, v11 offset:{HL}")
    a("s_waitcnt lgkmcnt(0)")
    for e in range(8):
        a(f"v_mfma_f32_16x16x32_bf16 {vr(ACCW+4*e,4)}, {vr(XA,4)}, {vr(P0+4*e,4)}, 0")
    a.nop(1)
    wide_publish(a, ACCW, PK, vFO, 0, f"s[{S_PM}:{S_PM+1}]")
    stamp(a, 5)
    a("s_endpgm")

    a.lab("L_wo")
    W0 = 16; W1 = 48; P0 = 80; P1 = 16; OA = 144; ACCW = 112; PK = 48
    vOW, vFO = 164, 165
    srd(a, SB, P_WO, 4096*1152)
    cb_masks(a)
    a(f"v_lshrrev_b32 v7, 4, v0\nv_mul_u32_u24 v{vOW}, {8*1152}, v7\nv_and_b32 v8, 15, v0\nv_lshl_add_u32 v{vOW}, v8, 4, v{vOW}")
    a(f"v_bfe_u32 v7, v0, 2, 2\ns_mov_b32 s{S_TMP}, {NPROD*128}\nv_mul_lo_u32 v{vFO}, v7, s{S_TMP}\nv_and_b32 v8, 3, v0\nv_lshl_add_u32 v{vFO}, v8, 5, v{vFO}")
    a(f"s_mul_i32 s{S_B0}, s{S_RIDX}, {64*1152}")
    a(f"s_lshl_b32 s{S_TMP}, s{S_WAVE}, 8\ns_add_u32 s{S_B2}, s{S_B0}, s{S_TMP}\ns_add_u32 s{S_B1}, s{S_B2}, {32*1152}")
    a(f"s_mul_i32 s{S_TMP2}, s{S_WAVE}, {4*NPROD*128}\ns_add_u32 s{S_B3}, s{S_B3}, s{S_TMP2}")
    if WOW: wait_lds(a, F_GO, 8, 1, 10)
    else: att_done()
    a(f"s_mov_b64 exec, s[{S_LM}:{S_LM+1}]")
    wide_loads(a, SB, S_B2, W0, vOW, win=WOW)
    wide_loads(a, SB, S_B1, W1, vOW, win=WOW, n0=8)
    a("s_mov_b64 exec, -1")
    a(f"v_and_b32 v8, 1, v0\nv_lshlrev_b32 v8, 7, v8\nv_lshrrev_b32 v9, 4, v0\nv_lshl_add_u32 v8, v9, 4, v8")
    a("s_waitcnt vmcnt(8)")
    wide_perm(a, W0, P0)
    a("s_waitcnt vmcnt(0)")
    wide_perm(a, W1, P1)
    wait_lds(a, F_O, 1, 1, 10)
    a(f"ds_read_b128 {vr(OA,4)}, v8 offset:{OL}\nds_read_b128 {vr(OA+4,4)}, v8 offset:{OL+64}")
    a("s_waitcnt lgkmcnt(0)")
    for e in range(8):
        a(f"v_mfma_f32_16x16x32_bf16 {vr(ACCW+4*e,4)}, {vr(OA,4)}, {vr(P0+4*e,4)}, 0")
    for e in range(8):
        a(f"v_mfma_f32_16x16x32_bf16 {vr(ACCW+4*e,4)}, {vr(OA+4,4)}, {vr(P1+4*e,4)}, {vr(ACCW+4*e,4)}")
    a.nop(1)
    wide_publish(a, ACCW, PK, vFO, 0, f"s[{S_PM}:{S_PM+1}]")
    stamp(a, 6)
    a("s_endpgm")

    a.lab("L_red")
    srd(a, SOUT, P_OUT, 2304)
    a("v_lshlrev_b32 v9, 4, v0")
    a(f"s_mul_i32 s{S_B2}, s{S_RIDX}, {NPROD*128}\ns_add_u32 s{S_B2}, s{S_B2}, {FP}")
    wait_lds(a, F_Q, 1, 1, 10)
    wait_lds(a, F_CB0, 4, 1, 10)
    wait_lds(a, F_CB1, 4, 1, 10)
    all_groups_wait(a, 11)
    lb = a.new(); lj = a.new()
    a(f"s_cmp_eq_u32 s{S_WAVE}, 0\ns_cbranch_scc0 {lb}")
    def mk(n):
        def ld():
            for i in range(n):
                a(f"s_add_u32 s{S_TMP}, s{S_B2}, {i*1024}")
                a(f"buffer_load_dwordx4 {vr(16+4*i,4)}, v9, {S(SWS)}, s{S_TMP} offen sc1")
        return ld
    poll_loop(a, mk(1), range(16, 20), 10, sleep=4)
    poll_loop(a, mk(8), range(16, 48), 10, sleep=2)
    for i in (6, 7):
        for k in range(4): a(f"v_add_f32 v{16+4*(i-6)+k}, v{16+4*(i-6)+k}, v{16+4*i+k}")
    a(f"s_branch {lj}")
    a.lab(lb)
    a(f"s_mul_i32 s{S_TMP}, s{S_WAVE}, {48*128}\ns_add_u32 s{S_B2}, s{S_B2}, s{S_TMP}\ns_add_u32 s{S_B2}, s{S_B2}, {(64-48)*128}")
    poll_loop(a, mk(1), range(16, 20), 10, sleep=4)
    poll_loop(a, mk(6), range(16, 40), 10, sleep=2)
    a.lab(lj)
    for k in range(4):
        a(f"v_add_f32 v{16+k}, v{16+k}, v{20+k}\nv_add_f32 v{24+k}, v{24+k}, v{28+k}\nv_add_f32 v{32+k}, v{32+k}, v{36+k}")
    for k in range(4):
        a(f"v_add_f32 v{16+k}, v{16+k}, v{24+k}")
    for k in range(4):
        a(f"v_add_f32 v{16+k}, v{16+k}, v{32+k}")
    a.nop(2)
    for k in range(4):
        a(f"v_add_f32_dpp v{16+k}, v{16+k}, v{16+k} row_ror:8 row_mask:0xf bank_mask:0xf")
    for sw in ("v_permlane16_swap_b32", "v_permlane32_swap_b32"):
        for k in range(4): a(f"v_mov_b32 v{20+k}, v{16+k}")
        a.nop(2)
        for k in range(4): a(f"{sw} v{16+k}, v{20+k}")
        a.nop(1)
        for k in range(4): a(f"v_add_f32 v{16+k}, v{16+k}, v{20+k}")
    a(f"s_lshl_b32 s{S_TMP}, s{S_WAVE}, 7\nv_add_u32 v9, s{S_TMP}, v9")
    a("s_mov_b64 exec, 0xff")
    a(f"ds_write_b128 v9, v[16:19] offset:{REDL}")
    a("s_mov_b64 exec, 1")
    a(f"ds_add_rtn_u32 v10, v1, v2 offset:{F_RED}")
    a("s_mov_b64 exec, -1")
    a("s_waitcnt lgkmcnt(0)")
    a(f"v_readfirstlane_b32 s{S_TMP}, v10")
    a(f"s_cmp_eq_u32 s{S_TMP}, 3\ns_cbranch_scc0 L_end")
    wait_lds(a, F_GATE, 1, 1, 10)
    a("v_lshlrev_b32 v9, 2, v0")
    a(f"ds_read_b32 v16, v9 offset:{REDL}\nds_read_b32 v17, v9 offset:{REDL+128}\nds_read_b32 v18, v9 offset:{REDL+256}\nds_read_b32 v19, v9 offset:{REDL+384}")
    a(f"s_cmp_ge_u32 s{S_RIDX}, 18\ns_cselect_b32 s{S_TMP}, 4, 0\nv_mov_b32 v11, s{S_TMP}")
    a(f"ds_read_b32 v20, v11 offset:{GATEL}")
    a("s_waitcnt lgkmcnt(0)")
    a("v_add_f32 v17, v17, v18\nv_add_f32 v17, v17, v19")
    a("v_sub_f32 v21, 1.0, v20")
    a("v_cvt_pk_bf16_f32 v16, v16, v17\nv_cvt_pk_bf16_f32 v21, v21, v21")
    a("v_and_b32 v17, 0xffff0000, v16\nv_lshlrev_b32 v16, 16, v16\nv_and_b32 v21, 0xffff0000, v21")
    a("v_mul_f32 v16, v20, v16\nv_mul_f32 v17, v21, v17\nv_cvt_pk_bf16_f32 v16, v16, v17")
    a("v_and_b32 v17, 0xffff0000, v16\nv_lshlrev_b32 v16, 16, v16\nv_add_f32 v16, v16, v17\nv_cvt_pk_bf16_f32 v16, v16, v16")
    a(f"v_lshlrev_b32 v9, 1, v0\ns_lshl_b32 s{S_TMP}, s{S_RIDX}, 6")
    a("s_mov_b32 exec_lo, -1\ns_mov_b32 exec_hi, 0")
    a(f"buffer_store_short v16, v9, {S(SOUT)}, s{S_TMP} offen")
    stamp(a, 7)
    if DIAG2:
        a("s_mov_b64 exec, -1")
        a(f"s_cmp_eq_u32 s{S_RIDX}, 0\ns_cbranch_scc0 L_end")
        for _ in range(6): a("s_sleep 127")
        a(f"s_sub_u32 s{S_C2}, s{S_ST0}, 20000")
        a(f"v_lshlrev_b32 v9, 6, v0\ns_mov_b32 s{S_B2}, {STAMPO}")
        for q in range(4):
            a(f"s_add_u32 s{S_TMP}, s{S_B2}, {q*4096}")
            for k in range(3):
                a(f"buffer_load_dwordx4 {vr(16+q*12+k*4,4)}, v9, {S(SWS)}, s{S_TMP} offen offset:{16*k} sc1")
        a("s_waitcnt vmcnt(0)")
        a(f"s_mov_b32 s{S_TMP}, 100000")
        for r in range(16, 64):
            a(f"v_subrev_u32 v{r}, s{S_C2}, v{r}")
            a(f"v_cmp_gt_u32 vcc, s{S_TMP}, v{r}")
            a("s_nop 1")
            a(f"v_sub_u32 v{r+48}, s{S_TMP}, v{r}")
            a(f"v_cndmask_b32 v{r}, 0, v{r}, vcc")
            a(f"v_cndmask_b32 v{r+48}, 0, v{r+48}, vcc")
        outs = [(16, i) for i in range(10)] + [(64, i) for i in (0, 2, 3, 8, 5, 7)]
        for o, (base, i) in enumerate(outs):
            a(f"v_max3_u32 v{120+o}, v{base+i}, v{base+12+i}, v{base+24+i}")
            a(f"v_max_u32 v{120+o}, v{120+o}, v{base+36+i}")
        for k in (1, 2, 4, 8):
            a.nop(2)
            for o in range(16): a(f"v_max_u32_dpp v{120+o}, v{120+o}, v{120+o} row_ror:{k} row_mask:0xf bank_mask:0xf")
        for sw in ("v_permlane16_swap_b32", "v_permlane32_swap_b32"):
            for o in range(16): a(f"v_mov_b32 v{140+o}, v{120+o}")
            a.nop(2)
            for o in range(16): a(f"{sw} v{120+o}, v{140+o}")
            a.nop(1)
            for o in range(16): a(f"v_max_u32 v{120+o}, v{120+o}, v{140+o}")
        for o in range(10, 16): a(f"v_sub_u32 v{120+o}, s{S_TMP}, v{120+o}")
        a("s_mov_b64 exec, 1")
        for k in range(4): a(f"buffer_store_dwordx4 {vr(120+4*k,4)}, v1, {S(SDBG)}, 0 offen offset:{16*k}")
    a("s_endpgm")

    a.lab("L_att")
    KR = 16; VRG = 80; QB = 144; S01 = 160
    srd(a, SA, P_K, 0x2000000)
    srd(a, SB, P_V, 0x2000000)
    a(f"s_sub_u32 s{S_B0}, s{S_WAVE}, 4\ns_and_b32 s{S_B1}, s{S_B0}, 1\ns_lshr_b32 s{S_B2}, s{S_B0}, 1")
    a(f"s_lshl_b32 s{S_TMP}, s{S_B1}, 4\ns_add_u32 s{S_TMP}, s{S_TMP}, s{S_KVH}\ns_lshl_b32 s{S_C2}, s{S_TMP}, 20")
    if SPREAD:
        a(f"s_lshl_b32 s{S_TMP}, s{S_SPL}, 12\ns_add_u32 s{S_C2}, s{S_C2}, s{S_TMP}\ns_lshl_b32 s{S_TMP}, s{S_B2}, 16\ns_add_u32 s{S_C2}, s{S_C2}, s{S_TMP}")
    else:
        a(f"s_lshl_b32 s{S_TMP}, s{S_SPL}, 16\ns_add_u32 s{S_C2}, s{S_C2}, s{S_TMP}\ns_lshl_b32 s{S_TMP}, s{S_B2}, 14\ns_add_u32 s{S_C2}, s{S_C2}, s{S_TMP}")
    TS = 262144 if SPREAD else 4096
    a("v_and_b32 v3, 15, v0\nv_lshrrev_b32 v4, 4, v0")
    a("v_lshlrev_b32 v5, 8, v3\nv_lshl_add_u32 v5, v4, 4, v5")
    a("v_lshlrev_b32 v6, 10, v4\nv_lshl_add_u32 v6, v3, 4, v6")
    n = 0
    for T in range(4):
        a(f"s_add_u32 s{S_TMP}, s{S_C2}, {T*TS}")
        for j in range(4):
            if n == BARN:
                a("s_barrier")
                stamp_a0(a, 14)
            if WIN and n >= WIN: a(f"s_waitcnt vmcnt({WIN-1})")
            n += 1
            a(f"buffer_load_dwordx4 {vr(KR+(T*4+j)*4,4)}, v5, {S(SA)}, s{S_TMP} offen offset:{j*64} nt")
    if KHOLD < 16:
        a(f"s_waitcnt vmcnt({KHOLD})")
        wait_lds(a, F_GI, 1, 1, 12, limit=GISPIN)
    for T in range(4):
        a(f"s_add_u32 s{S_TMP}, s{S_C2}, {T*TS}")
        for r in range(4):
            if WIN and n >= WIN: a(f"s_waitcnt vmcnt({WIN-1})")
            n += 1
            a(f"buffer_load_dwordx4 {vr(VRG+(T*4+r)*4,4)}, v6, {S(SB)}, s{S_TMP} offen offset:{r*256} nt")
    lds_inc(a, F_GO, 1, 2)
    stamp_a0(a, 10)
    a("v_and_b32 v7, 1, v0\nv_lshlrev_b32 v7, 4, v7\nv_mov_b32 v12, 0xffff\nv_lshlrev_b32 v12, v7, v12\nv_bfe_u32 v7, v0, 1, 2")
    for u in range(4):
        a(f"v_cmp_eq_u32 vcc, {u}, v7\ns_nop 1\nv_cndmask_b32 v{8+u}, 0, v12, vcc")
    a(f"v_bfe_u32 v7, v0, 3, 1\nv_lshlrev_b32 v7, 8, v7\nv_lshl_add_u32 v7, v4, 4, v7\ns_lshl_b32 s{S_TMP}, s{S_B1}, 9\nv_add_u32 v7, s{S_TMP}, v7")
    wait_lds(a, F_Q, 1, 1, 12)
    for j in range(4):
        a(f"ds_read_b128 {vr(QB+4*j,4)}, v7 offset:{QL+64*j}")
    a("s_waitcnt lgkmcnt(0)")
    SR = [S01, S01+4, KR, KR+4]
    for T in range(4):
        a(f"s_waitcnt vmcnt({16 + 12 - 4*T})")
        for j in range(4):
            c = "0" if j == 0 else vr(SR[T], 4)
            a(f"v_mfma_f32_16x16x32_bf16 {vr(SR[T],4)}, {vr(KR+(T*4+j)*4,4)}, {vr(QB+4*j,4)}, {c}")
    a.nop(8)
    sreg = [SR[T]+r for T in range(4) for r in range(4)]
    a(f"s_mov_b32 s{S_TMP}, 0x3db504f3\ns_mov_b32 s{S_TMP2}, 0x3fb8aa3b")
    for i in range(0, 16, 2):
        x, y = sreg[i], sreg[i+1]
        a(f"v_cvt_pk_bf16_f32 v12, v{x}, v{y}\nv_lshlrev_b32 v{x}, 16, v12\nv_and_b32 v{y}, 0xffff0000, v12")
        a(f"v_mul_f32 v{x}, s{S_TMP}, v{x}\nv_mul_f32 v{y}, s{S_TMP}, v{y}")
        a(f"v_cvt_pk_bf16_f32 v12, v{x}, v{y}\nv_lshlrev_b32 v{x}, 16, v12\nv_and_b32 v{y}, 0xffff0000, v12")
    a(f"v_max3_f32 v12, v{sreg[0]}, v{sreg[1]}, v{sreg[2]}")
    for i in range(3, 15, 2):
        a(f"v_max3_f32 v12, v12, v{sreg[i]}, v{sreg[i+1]}")
    a(f"v_max_f32 v12, v12, v{sreg[15]}")
    for sw in ("v_permlane16_swap_b32", "v_permlane32_swap_b32"):
        a("v_mov_b32 v13, v12")
        a.nop(2)
        a(f"{sw} v12, v13")
        a.nop(1)
        a("v_max_f32 v12, v12, v13")
    a(f"v_mul_f32 v12, s{S_TMP2}, v12")
    for r in sreg:
        a(f"v_fma_f32 v{r}, v{r}, s{S_TMP2}, -v12")
    for r in sreg:
        a(f"v_exp_f32 v{r}, v{r}")
    a.nop(1)
    a(f"v_add_f32 v13, v{sreg[0]}, v{sreg[1]}")
    for r in sreg[2:]:
        a(f"v_add_f32 v13, v13, v{r}")
    AP = [24+4*i for i in range(14)] + [QB, QB+4]
    for i, r in enumerate(sreg):
        a(f"v_cvt_pk_bf16_f32 v14, v{r}, v{r}")
        for u in range(4):
            a(f"v_and_b32 v{AP[i]+u}, v14, v{8+u}")
    for sw in ("v_permlane16_swap_b32", "v_permlane32_swap_b32"):
        a("v_mov_b32 v14, v13")
        a.nop(2)
        a(f"{sw} v13, v14")
        a.nop(1)
        a("v_add_f32 v13, v13, v14")
    a(f"v_bfe_u32 v14, v0, 3, 1\nv_lshlrev_b32 v14, 3, v14\ns_lshl_b32 s{S_TMP}, s{S_B0}, 4\nv_add_u32 v14, s{S_TMP}, v14")
    a("s_mov_b64 exec, 0x101")
    a(f"ds_write_b64 v14, v[12:13] offset:{STL}")
    a("s_mov_b64 exec, -1")
    OACC = [QB+8, QB+12]
    stamp_a0(a, 11)
    for i in range(16):
        a(f"s_waitcnt vmcnt({15-i})")
        c = "0" if i < 2 else vr(OACC[i & 1], 4)
        a(f"v_mfma_f32_16x16x32_bf16 {vr(OACC[i&1],4)}, {vr(AP[i],4)}, {vr(VRG+4*i,4)}, {c}")
    a(f"v_lshrrev_b32 v14, 5, v0\nv_lshlrev_b32 v14, 9, v14\nv_lshl_add_u32 v14, v3, 5, v14\nv_and_b32 v15, 1, v4\nv_lshl_add_u32 v14, v15, 4, v14\ns_lshl_b32 s{S_TMP}, s{S_B0}, 10\nv_add_u32 v14, s{S_TMP}, v14")
    a.nop(3)
    for k in range(4):
        a(f"v_add_f32 v{16+k}, v{OACC[0]+k}, v{OACC[1]+k}")
    a(f"ds_write_b128 v14, v[16:19] offset:{OB}")
    stamp_a0(a, 12)
    a(f"s_lshl_b32 s{S_TMP}, s{S_B1}, 2\nv_mov_b32 v15, s{S_TMP}")
    a("s_mov_b64 exec, 1")
    a(f"ds_add_rtn_u32 v14, v15, v2 offset:{F_CB0}")
    a("s_mov_b64 exec, -1")
    a("s_waitcnt lgkmcnt(0)")
    a(f"v_readfirstlane_b32 s{S_TMP}, v14")
    a(f"s_cmp_eq_u32 s{S_TMP}, 3\ns_cbranch_scc0 L_att_done")
    a(f"v_lshrrev_b32 v14, 5, v0\nv_lshlrev_b32 v15, 3, v14\ns_lshl_b32 s{S_TMP}, s{S_B1}, 4\nv_add_u32 v15, s{S_TMP}, v15")
    for wi in range(4):
        a(f"ds_read_b64 {vr(16+2*wi,2)}, v15 offset:{STL+32*wi}")
    a(f"v_lshlrev_b32 v15, 9, v14\nv_and_b32 v13, 31, v0\nv_lshl_add_u32 v15, v13, 4, v15\ns_lshl_b32 s{S_TMP}, s{S_B1}, 10\nv_add_u32 v15, s{S_TMP}, v15")
    for wi in range(4):
        a(f"ds_read_b128 {vr(24+4*wi,4)}, v15 offset:{OB+2048*wi}")
    a("s_waitcnt lgkmcnt(4)")
    a("v_max3_f32 v40, v16, v18, v20\nv_max_f32 v40, v40, v22")
    for wi in range(4):
        a(f"v_sub_f32 v{16+2*wi}, v{16+2*wi}, v40")
    for wi in range(4):
        a(f"v_exp_f32 v{16+2*wi}, v{16+2*wi}")
    a.nop(1)
    a("v_mul_f32 v41, v16, v17\nv_fmac_f32 v41, v18, v19\nv_fmac_f32 v41, v20, v21\nv_fmac_f32 v41, v22, v23")
    a("s_waitcnt lgkmcnt(0)")
    for k in range(4):
        a(f"v_mul_f32 v{44+k}, v16, v{24+k}")
        for wi in range(1, 4):
            a(f"v_fmac_f32 v{44+k}, v{16+2*wi}, v{24+4*wi+k}")
    for k in range(4):
        a(f"v_min_u32 v{44+k}, s{S_C1}, v{44+k}")
    a(f"v_min_u32 v40, s{S_C1}, v40\nv_min_u32 v41, s{S_C1}, v41")
    a("v_lshlrev_b32 v15, 13, v4\nv_lshl_add_u32 v15, v3, 4, v15")
    a(f"s_lshl_b32 s{S_C2}, s{S_KVH}, 15\ns_lshl_b32 s{S_TMP}, s{S_SPL}, 9\ns_add_u32 s{S_C2}, s{S_C2}, s{S_TMP}\ns_lshl_b32 s{S_TMP}, s{S_B1}, 8\ns_add_u32 s{S_C2}, s{S_C2}, s{S_TMP}\ns_add_u32 s{S_C2}, s{S_C2}, {OP}")
    a(f"buffer_store_dwordx4 v[44:47], v15, {S(SWS)}, s{S_C2} offen sc1")
    a("v_lshlrev_b32 v15, 8, v14")
    a(f"s_lshl_b32 s{S_C2}, s{S_KVH}, 9\ns_lshl_b32 s{S_TMP}, s{S_SPL}, 4\ns_add_u32 s{S_C2}, s{S_C2}, s{S_TMP}\ns_lshl_b32 s{S_TMP}, s{S_B1}, 3\ns_add_u32 s{S_C2}, s{S_C2}, s{S_TMP}\ns_add_u32 s{S_C2}, s{S_C2}, {ST}")
    a("s_mov_b32 exec_lo, 1\ns_mov_b32 exec_hi, 1")
    a(f"buffer_store_dwordx2 v[40:41], v15, {S(SWS)}, s{S_C2} offen sc1")
    a("s_mov_b64 exec, -1")
    lds_inc(a, F_PUB, 1, 2)
    stamp(a, 8)
    a.lab("L_att_done")
    la = a.new()
    a(f"s_cmp_eq_u32 s{S_B0}, 1\ns_cbranch_scc0 {la}")
    a(f"s_mov_b32 s{S_WAVE}, 4")
    a(f"s_cmp_eq_u32 s{S_ROLE}, 0\ns_cbranch_scc1 L_ffn")
    a(f"s_cmp_eq_u32 s{S_ROLE}, 1\ns_cbranch_scc1 L_wo")
    a.lab(la)
    lb2 = a.new()
    a(f"s_cmp_eq_u32 s{S_B0}, 2\ns_cbranch_scc0 {lb2}")
    a(f"s_cmp_eq_u32 s{S_ROLE}, 0\ns_cbranch_scc1 L_h")
    a.lab(lb2)
    a(f"s_cmp_eq_u32 s{S_B0}, 0\ns_cbranch_scc0 L_end")
    a(f"s_cmp_eq_u32 s{S_ROLE}, 1\ns_cbranch_scc0 L_end")
    g = a.new("G"); gd = a.new("GD")
    a(f"s_lshr_b32 s{S_B2}, s{S_RIDX}, 2\ns_lshl_b32 s{S_B2}, s{S_B2}, 4\ns_mov_b32 s{S_CNT}, 0")
    a.lab(g)
    a(f"buffer_load_dword v16, v1, {S(SDBG)}, s{S_B2} offen sc1")
    a("s_waitcnt vmcnt(0)")
    a(f"v_readfirstlane_b32 s{S_TMP}, v16")
    a(f"s_cmp_ge_u32 s{S_TMP}, 16\ns_cbranch_scc1 {gd}")
    a(f"s_add_u32 s{S_CNT}, s{S_CNT}, 1\ns_cmp_gt_u32 s{S_CNT}, {SPIN_LIMIT}\ns_cbranch_scc1 {gd}")
    a(f"s_sleep 8\ns_branch {g}")
    a.lab(gd)
    a(f"s_lshr_b32 s{S_TMP}, s{S_RIDX}, 1\ns_lshl_b32 s{S_B2}, s{S_TMP}, 8\ns_add_u32 s{S_B2}, s{S_B2}, {ST}")
    a(f"s_lshl_b32 s{S_C2}, s{S_RIDX}, 13\ns_add_u32 s{S_C2}, s{S_C2}, {OP}")
    a("v_and_b32 v13, 31, v0\nv_lshlrev_b32 v13, 3, v13")
    a("v_lshlrev_b32 v14, 3, v4")
    a("v_lshlrev_b32 v15, 4, v0")
    if OPRE:
        pl = a.new("Q"); pd = a.new("QD")
        a(f"s_add_u32 s{S_FP}, s{P_WS}, s{S_B2}\ns_addc_u32 s{S_FP+1}, s{P_WS+1}, 0\ns_mov_b32 s{S_CNT}, 0")
        a.lab(pl)
        for hf in range(4):
            a(f"s_load_dwordx16 s[36:51], s[{S_FP}:{S_FP+1}], {64*hf} glc")
            a("s_waitcnt lgkmcnt(0)")
            for k in range(1, 16): a(f"s_max_u32 s36, s36, s{36+k}")
            a(f"s_cmp_eq_u32 s36, -1\ns_cbranch_scc1 {pl}_r")
        a(f"s_branch {pd}")
        a.lab(pl + "_r")
        a(f"s_add_u32 s{S_CNT}, s{S_CNT}, 1\ns_cmp_gt_u32 s{S_CNT}, 200\ns_cbranch_scc1 {pd}")
        a(f"s_sleep 1\ns_branch {pl}")
        a.lab(pd)
    elif OPRE0:
        def ld0():
            a(f"buffer_load_dwordx2 v[16:17], v13, {S(SWS)}, s{S_B2} offen sc1")
        poll_loop(a, ld0, [16, 17], 12, sleep=2)
    def ld1():
        for t in range(8):
            a(f"buffer_load_dwordx2 {vr(16+2*t,2)}, v14, {S(SWS)}, s{S_B2} offen offset:{32*t} sc1")
        for t in range(8):
            if t % 4 == 0: a(f"s_add_u32 s{S_TMP}, s{S_C2}, {t*1024}")
            a(f"buffer_load_dwordx4 {vr(32+4*t,4)}, v15, {S(SWS)}, s{S_TMP} offen offset:{(t%4)*1024} sc1")
    poll_loop(a, ld1, range(16, 64), 12, sleep=1)
    a("v_max3_f32 v12, v16, v18, v20\nv_max3_f32 v12, v12, v22, v24\nv_max3_f32 v12, v12, v26, v28\nv_max_f32 v12, v12, v30")
    a("v_mov_b32 v13, v12")
    a.nop(2)
    a("v_permlane32_swap_b32 v12, v13")
    a.nop(1)
    a("v_max_f32 v12, v12, v13")
    for t in range(8): a(f"v_sub_f32 v{16+2*t}, v{16+2*t}, v12")
    for t in range(8): a(f"v_exp_f32 v{16+2*t}, v{16+2*t}")
    a.nop(1)
    a("v_mul_f32 v64, v16, v17")
    for t in range(1, 8): a(f"v_fmac_f32 v64, v{16+2*t}, v{17+2*t}")
    for k in range(4):
        a(f"v_mul_f32 v{65+k}, v16, v{32+k}")
        for t in range(1, 8): a(f"v_fmac_f32 v{65+k}, v{16+2*t}, v{32+4*t+k}")
    for k in range(5): a(f"v_mov_b32 v{70+k}, v{64+k}")
    a.nop(2)
    for k in range(5): a(f"v_permlane32_swap_b32 v{64+k}, v{70+k}")
    a.nop(1)
    for k in range(5): a(f"v_add_f32 v{64+k}, v{64+k}, v{70+k}")
    a("v_rcp_f32 v64, v64\ns_nop 0")
    for k in range(4): a(f"v_mul_f32 v{65+k}, v64, v{65+k}")
    a("v_cvt_pk_bf16_f32 v66, v65, v66\nv_cvt_pk_bf16_f32 v67, v67, v68")
    a("v_and_b32 v13, 31, v0\nv_lshlrev_b32 v13, 3, v13")
    a(f"ds_write_b64 v13, v[66:67] offset:{OL}")
    a("s_waitcnt lgkmcnt(0)")
    lds_inc(a, F_O, 1, 2)
    stamp(a, 9)
    a.lab("L_end")
    a("s_endpgm")
    out += a.L
    out.append(f""".section .rodata,"a"
.p2align 6
.amdhsa_kernel {KN}
  .amdhsa_next_free_vgpr 168
  .amdhsa_next_free_sgpr 102
  .amdhsa_accum_offset 168
  .amdhsa_group_segment_fixed_size 0
  .amdhsa_kernarg_size 104
  .amdhsa_user_sgpr_count 2
  .amdhsa_user_sgpr_kernarg_segment_ptr 1
  .amdhsa_system_sgpr_workgroup_id_x 1
.end_amdhsa_kernel""")
    return "\n".join(out) + "\n"

if __name__ == "__main__":
    if len(sys.argv) > 2 and sys.argv[2] == "stamps": STAMPS = True
    for kv in sys.argv[3:]:
        k, v = kv.split("="); globals()[k] = int(v)
    if len(sys.argv) > 2 and sys.argv[2] == "diag": DIAG = True
    if len(sys.argv) > 2 and sys.argv[2] == "diag2": DIAG2 = True
    open(sys.argv[1], "w").write(gen())
```

```python
import sys

KN = "gated_mix__gqa_block_cached__swiglu_ffn__decode_kernel"
STAMPS = False

QP = 0x1A0000
GUP = 0x1E0000
OP = 0x10000
ST = 0x90000
FP = 0xA0000
NPROD = 208
NB = 0x190000
STAMPO = 0x8000000
F_INIT, F_Q, F_GO, F_CB0, F_CB1, F_GU, F_O, F_RED, F_GATE = 0, 4, 8, 12, 16, 20, 24, 28, 32
F_PUB = 36
F_H = 40
F_GI = 44
QL = 0x100
STL = 0x500
OB = 0x800
GUL = 0x2800
HL = 0x3800
OL = 0x3A00
REDL = 0x3B00
GATEL = 0x3D00
LDS_BYTES = 0x4000
SPIN_LIMIT = 400000

class A:
    def __init__(s): s.L = []; s.n = 0
    def __call__(s, t):
        for l in t.strip("\n").split("\n"): s.L.append("    " + l.strip())
    def lab(s, l): s.L.append(l + ":")
    def new(s, p="L"):
        s.n += 1; return f"{p}_{s.n}"
    def nop(s, k):
        while k > 0:
            c = min(k, 16); s(f"s_nop {c-1}"); k -= c

def vr(b, n=1): return f"v{b}" if n == 1 else f"v[{b}:{b+n-1}]"

def srd(a, q, lo, nbytes):
    a(f"s_mov_b32 s{q}, s{lo}\ns_mov_b32 s{q+1}, s{lo+1}\ns_mov_b32 s{q+2}, {nbytes}\ns_mov_b32 s{q+3}, 0x20000")

P_X, P_K, P_V, P_WQ, P_WO, P_BX, P_WG, P_WU = 36, 38, 40, 42, 44, 46, 48, 50
P_WD, P_GW, P_OUT, P_DBG, P_WS = 52, 54, 56, 58, 60
SX, SWS, SA, SB, SC, SDBG, SOUT = 8, 12, 16, 20, 24, 28, 32
def S(q): return f"s[{q}:{q+3}]"
S_WAVE = 3; S_U = 4; S_T = 5; S_TMP = 6; S_TMP2 = 7
S_ROLE = 62
S_RIDX = 63
S_PROD = 64
S_CNT = 65
S_B0 = 66; S_B1 = 67; S_B2 = 68; S_B3 = 69
S_EX = 70
S_EX2 = 72
S_SELLO = 74; S_SELHI = 75
S_KVH = 76; S_SPL = 77
S_C1 = 78; S_C2 = 79
S_ST0 = 80
S_FP = 88; S_FV = 92; S_CBQ = 90
S_LM = 82; S_PM = 84
S_STR = 96; S_JB = 97; S_JO = 98; S_JBS = 99; S_JX = 100; S_J56 = 91
POLL0 = 32
WIN = 0
WINF = 8
GOF = 1
JW = 0
GSLEEP = 1
RSLEEP = 2
RSLEEP0 = 4
MULTI = 0
LATE = 1
LATEN = 8
HSLEEP = 2
WOW = 0
WDW = 0
OPRE0 = 0
QROT = 0
GROT = 0
SPREAD = 0
BARN = 0
X1EARLY = 0
OPRE = 0
QPRE = 1
KHOLD = 16
GISPIN = 40
PRE = 0
PREW = 0

DIAG = False
DIAG2 = False
def stamp(a, idx):
    if DIAG:
        a(f"s_memrealtime s[{S_ST0+2*0}:{S_ST0+1}]")
        a("s_waitcnt lgkmcnt(0)")
        if idx == 0: a(f"s_not_b32 s{S_ST0}, s{S_ST0}")
        a(f"v_mov_b32 v14, s{S_ST0}")
        a("v_mov_b32 v15, 0")
        a(f"s_mov_b64 s[86:87], exec")
        a("s_mov_b64 exec, 1")
        a(f"buffer_atomic_umax v14, v15, {S(SDBG)}, 0 offen offset:{4*idx}")
        a(f"s_mov_b64 exec, s[86:87]")
    elif STAMPS or DIAG2:
        a(f"s_memrealtime s[{S_ST0+2*0}:{S_ST0+1}]")
        a("s_waitcnt lgkmcnt(0)")
        a(f"v_mov_b32 v14, s{S_ST0}")
        a(f"s_lshl_b32 s101, s2, 6")
        a(f"s_add_u32 s101, s101, {STAMPO + 4*idx}")
        a("v_mov_b32 v15, 0")
        a(f"s_mov_b64 s[86:87], exec")
        a("s_mov_b64 exec, 1")
        a(f"buffer_store_dword v14, v15, {S(SWS)}, s101 offen sc1")
        a(f"s_mov_b64 exec, s[86:87]")

def stamp_a0(a, idx):
    if STAMPS:
        l = a.new()
        a(f"s_cmp_eq_u32 s{S_B0}, 7\ns_cbranch_scc0 {l}")
        stamp(a, idx)
        a.lab(l)

def stamp_w(a, idx, w=1):
    if STAMPS:
        l = a.new()
        a(f"s_cmp_eq_u32 s{S_WAVE}, {w}\ns_cbranch_scc0 {l}")
        stamp(a, idx)
        a.lab(l)

def wait_lds(a, flag, target, vz, vt, limit=None):
    l = a.new("W"); d = a.new("WD")
    a(f"s_mov_b32 s{S_CNT}, 0")
    a.lab(l)
    a(f"ds_read_b32 v{vt}, v{vz} offset:{flag}")
    a("s_waitcnt lgkmcnt(0)")
    a(f"v_readfirstlane_b32 s{S_TMP}, v{vt}")
    a(f"s_cmp_ge_u32 s{S_TMP}, {target}")
    a(f"s_cbranch_scc1 {d}")
    a(f"s_add_u32 s{S_CNT}, s{S_CNT}, 1")
    a(f"s_cmp_gt_u32 s{S_CNT}, {SPIN_LIMIT if limit is None else limit}")
    a(f"s_cbranch_scc1 {d}")
    a("s_sleep 1")
    a(f"s_branch {l}")
    a.lab(d)

def group_flag_wait(a, want, first_sleep, sleep):
    l = a.new("G"); d = a.new("GD"); lv = a.new("GV"); lc = a.new("GC")
    a(f"s_mov_b32 s{S_CNT}, 0\ns_lshl_b32 s{S_B2}, s{S_KVH}, 4\ns_mov_b32 s{S_TMP2}, {want}")
    a(f"s_add_u32 s{S_FP}, s{P_DBG}, s{S_B2}\ns_addc_u32 s{S_FP+1}, s{P_DBG+1}, 0")
    if first_sleep: a(f"s_sleep {first_sleep}")
    a.lab(l)
    a(f"s_cmp_gt_u32 s{S_CNT}, 32\ns_cbranch_scc1 {lv}")
    a(f"s_load_dwordx4 s[{S_FV}:{S_FV+3}], s[{S_FP}:{S_FP+1}], 0 glc")
    a("s_waitcnt lgkmcnt(0)")
    a(f"s_and_b32 s{S_FV}, s{S_FV}, s{S_FV+1}\ns_and_b32 s{S_FV+2}, s{S_FV+2}, s{S_FV+3}\ns_and_b32 s{S_TMP}, s{S_FV}, s{S_FV+2}")
    a(f"s_branch {lc}")
    a.lab(lv)
    a(f"buffer_load_dwordx4 v[16:19], v1, {S(SDBG)}, s{S_B2} offen sc1")
    a("s_waitcnt vmcnt(0)")
    a("v_and_b32 v16, v16, v17\nv_and_b32 v18, v18, v19\nv_and_b32 v16, v16, v18\ns_nop 0")
    a(f"v_readfirstlane_b32 s{S_TMP}, v16")
    a.lab(lc)
    a(f"s_and_b32 s{S_TMP}, s{S_TMP}, s{S_TMP2}")
    a(f"s_cmp_eq_u32 s{S_TMP}, s{S_TMP2}\ns_cbranch_scc1 {d}")
    a(f"s_add_u32 s{S_CNT}, s{S_CNT}, 1\ns_cmp_gt_u32 s{S_CNT}, {SPIN_LIMIT}\ns_cbranch_scc1 {d}")
    a(f"s_sleep {sleep}\ns_branch {l}")
    a.lab(d)

def lds_inc(a, flag, vz, vone):
    a(f"s_mov_b64 s[{S_EX}:{S_EX+1}], exec\ns_mov_b64 exec, 1")
    a(f"ds_add_u32 v{vz}, v{vone} offset:{flag}")
    a(f"s_mov_b64 exec, s[{S_EX}:{S_EX+1}]")

def umax_chain(a, dst, regs):
    regs = list(regs)
    if len(regs) == 1:
        a(f"v_mov_b32 v{dst}, v{regs[0]}"); return
    if len(regs) == 2:
        a(f"v_max_u32 v{dst}, v{regs[0]}, v{regs[1]}"); return
    a(f"v_max3_u32 v{dst}, v{regs[0]}, v{regs[1]}, v{regs[2]}")
    i = 3
    while i < len(regs):
        if i + 1 < len(regs):
            a(f"v_max3_u32 v{dst}, v{dst}, v{regs[i]}, v{regs[i+1]}"); i += 2
        else:
            a(f"v_max_u32 v{dst}, v{dst}, v{regs[i]}"); i += 1

def poll_loop(a, emit_loads, regs, vt, sleep=2):
    l = a.new("P"); d = a.new("PD")
    a(f"s_mov_b32 s{S_CNT}, 0")
    a.lab(l)
    emit_loads()
    a("s_waitcnt vmcnt(0)")
    umax_chain(a, vt, regs)
    a(f"v_cmp_eq_u32 vcc, -1, v{vt}")
    a(f"s_cbranch_vccz {d}")
    a(f"s_add_u32 s{S_CNT}, s{S_CNT}, 1")
    a(f"s_cmp_gt_u32 s{S_CNT}, {SPIN_LIMIT}")
    a(f"s_cbranch_scc1 {d}")
    a(f"s_sleep {sleep}")
    a(f"s_branch {l}")
    a.lab(d)

def job_params_q(a):
    srd(a, SA, P_WQ, 576*8192)
    a(f"s_mov_b32 s{S_STR}, 8192\ns_and_b32 s{S_TMP}, s2, 7")
    a(f"s_mul_i32 s{S_JX}, s{S_TMP}, 144\ns_mul_i32 s{S_JB}, s{S_TMP}, {72*8192}")
    a(f"s_lshl_b32 s{S_JO}, s{S_TMP}, 15\ns_lshr_b32 s{S_TMP}, s2, 3")
    a(f"s_lshl_b32 s{S_TMP2}, s{S_TMP}, 8\ns_add_u32 s{S_JB}, s{S_JB}, s{S_TMP2}")
    a(f"s_lshl_b32 s{S_TMP2}, s{S_TMP}, 9\ns_add_u32 s{S_JO}, s{S_JO}, s{S_TMP2}\ns_add_u32 s{S_JO}, s{S_JO}, {QP}")
    a(f"s_mov_b32 s{S_JBS}, 16384")

def job_params_gu(a, sid, want_srd=True):
    lu = a.new(); lj = a.new()
    a(f"s_cmp_ge_u32 s{sid}, 288\ns_cbranch_scc1 {lu}")
    if want_srd: srd(a, SA, P_WG, 576*9216)
    a(f"s_mov_b32 s{S_JO}, {GUP}\ns_branch {lj}")
    a.lab(lu)
    if want_srd: srd(a, SA, P_WU, 576*9216)
    a(f"s_mov_b32 s{S_JO}, {GUP + 16*18432}\ns_sub_u32 s{sid}, s{sid}, 288")
    a.lab(lj)
    a(f"s_mov_b32 s{S_STR}, 9216\ns_and_b32 s{S_TMP}, s{sid}, 7")
    a(f"s_mul_i32 s{S_JX}, s{S_TMP}, 144\ns_mul_i32 s{S_JB}, s{S_TMP}, {72*9216}")
    a(f"s_mul_i32 s{S_TMP}, s{S_TMP}, {2*18432}\ns_add_u32 s{S_JO}, s{S_JO}, s{S_TMP}\ns_lshr_b32 s{S_TMP}, s{sid}, 3")
    a(f"s_lshl_b32 s{S_TMP2}, s{S_TMP}, 8\ns_add_u32 s{S_JB}, s{S_JB}, s{S_TMP2}")
    a(f"s_lshl_b32 s{S_TMP2}, s{S_TMP}, 9\ns_add_u32 s{S_JO}, s{S_JO}, s{S_TMP2}")
    a(f"s_mov_b32 s{S_JBS}, 18432")

def job_body(a):
    W = 16; XA = 140; ACC = 88; BT = 120; PK = 152; vO1, vO2 = 4, 5
    t1, t2, t3 = 7, 8, 9
    a(f"v_lshrrev_b32 v{t1}, 4, v0\nv_and_b32 v{t3}, 1, v0\nv_mul_u32_u24 v{t3}, 1152, v{t3}")
    a(f"v_lshl_add_u32 v{XA+9}, v{t1}, 4, v{t3}\nv_lshl_add_u32 v{t3}, v{t1}, 2, v{t3}")
    a(f"buffer_load_dwordx4 {vr(XA,4)}, v{XA+9}, {S(SX)}, s{S_JX} offen")
    a(f"buffer_load_dwordx4 {vr(XA+4,4)}, v{XA+9}, {S(SX)}, s{S_JX} offen offset:64")
    a(f"buffer_load_dword v{XA+8}, v{t3}, {S(SX)}, s{S_JX} offen offset:128")
    a(f"v_mul_lo_u32 v{vO2}, v{t1}, s{S_STR}\nv_and_b32 v{t3}, 15, v0\nv_lshlrev_b32 v{t2}, 4, v{t3}")
    a(f"v_lshl_add_u32 v{vO1}, v{vO2}, 3, v{t2}\nv_lshl_add_u32 v{vO2}, v{vO2}, 1, v{t2}")
    a(f"s_mul_i32 s{S_J56}, s{S_STR}, 25")
    for J in range(2):
        for j in range(8):
            if JW and J*8+j >= JW:
                lw = a.new()
                a(f"s_cmp_lg_u32 s{S_WAVE}, 2\ns_cbranch_scc1 {lw}\ns_waitcnt vmcnt({JW-1})")
                a.lab(lw)
            a(f"buffer_load_dwordx4 {vr(W+(J*8+j)*4,4)}, v{vO1}, {S(SA)}, s{S_JB} offen nt")
            a(f"s_add_u32 s{S_JB}, s{S_JB}, s{S_J56 if j == 7 else S_STR}")
    for j in range(2):
        a(f"buffer_load_dwordx4 {vr(W+64+j*4,4)}, v{vO2}, {S(SA)}, s{S_JB} offen nt")
        if j == 0: a(f"s_add_u32 s{S_JB}, s{S_JB}, s{S_STR}")
    lb = a.new()
    a(f"s_cmp_lg_u32 s{S_C2}, 0\ns_cbranch_scc1 {lb}")
    a("s_barrier")
    a.lab(lb)
    a(f"v_lshlrev_b32 v{t1}, 5, v{t3}")
    for k in (9, 10, 11): a(f"v_mov_b32 v{BT+k}, 0")
    a(f"s_add_u32 s{S_JBS}, s{S_JBS}, s{S_JO}")
    a("s_waitcnt vmcnt(0)")
    for k in (9, 10, 11): a(f"v_mov_b32 v{XA+k}, 0")
    for e in range(8):
        u, p = e >> 1, e & 1
        sel = S_SELHI if p else S_SELLO
        acc = ACC + 4*e
        for J in range(2):
            for t in range(4):
                lo = W + (J*8 + 2*t)*4 + u; hi = W + (J*8 + 2*t + 1)*4 + u
                a(f"v_perm_b32 v{BT + J*4 + t}, v{hi}, v{lo}, s{sel}")
        a(f"v_perm_b32 v{BT+8}, v{W+68+u}, v{W+64+u}, s{sel}")
        a.nop(2)
        a(f"v_mfma_f32_16x16x32_bf16 {vr(acc,4)}, {vr(XA,4)}, {vr(BT,4)}, 0")
        a(f"v_mfma_f32_16x16x32_bf16 {vr(acc,4)}, {vr(XA+4,4)}, {vr(BT+4,4)}, {vr(acc,4)}")
        a(f"v_mfma_f32_16x16x32_bf16 {vr(acc,4)}, {vr(XA+8,4)}, {vr(BT+8,4)}, {vr(acc,4)}")
    wait_lds(a, F_INIT, 1, 1, 12)
    for b in range(2):
        for e in range(8):
            a(f"v_min_u32 v{PK+8*b+e}, s{S_C1}, v{ACC+4*e+b}")
    a("s_mov_b64 exec, 0xffff")
    for b in range(2):
        so = S_JBS if b else S_JO
        a(f"buffer_store_dwordx4 {vr(PK+8*b,4)}, v{t1}, {S(SWS)}, s{so} offen sc1")
        a(f"buffer_store_dwordx4 {vr(PK+8*b+4,4)}, v{t1}, {S(SWS)}, s{so} offen offset:16 sc1")
    a("s_mov_b64 exec, -1")

def all_groups_wait(a, vt):
    l = a.new("G"); d = a.new("GD")
    a(f"s_mov_b32 s{S_CNT}, 0\nv_and_b32 v{vt}, 15, v0\nv_lshlrev_b32 v{vt}, 4, v{vt}\ns_mov_b32 s{S_TMP2}, 16")
    a.lab(l)
    a(f"buffer_load_dword v16, v{vt}, {S(SDBG)}, 0 offen sc1")
    a("s_waitcnt vmcnt(0)")
    a(f"v_cmp_gt_u32 vcc, s{S_TMP2}, v16")
    a(f"s_cbranch_vccz {d}")
    a(f"s_add_u32 s{S_CNT}, s{S_CNT}, 1\ns_cmp_gt_u32 s{S_CNT}, {SPIN_LIMIT}\ns_cbranch_scc1 {d}")
    a(f"s_sleep 16\ns_branch {l}")
    a.lab(d)

def cb_masks(a):
    a(f"s_cmp_eq_u32 s{S_WAVE}, 4")
    a(f"s_cselect_b32 s{S_LM}, 0x00ff00ff, -1\ns_mov_b32 s{S_LM+1}, s{S_LM}")
    a(f"s_mov_b32 s{S_PM}, 0xffff\ns_cselect_b32 s{S_PM}, 0xff, s{S_PM}\ns_mov_b32 s{S_PM+1}, 0")

def wide_perm(a, W, P):
    for e in range(8):
        u, p = e >> 1, e & 1
        sel = S_SELHI if p else S_SELLO
        for t in range(4):
            a(f"v_perm_b32 v{P+4*e+t}, v{W+(2*t+1)*4+u}, v{W+(2*t)*4+u}, s{sel}")

def wide_loads(a, srdq, sbase, W, vO, pre=99, hook=None, win=0, n0=0):
    for j in range(8):
        if j == pre: hook()
        if win and n0 + j >= win: a(f"s_waitcnt vmcnt({win-1})")
        a(f"s_add_u32 s{S_TMP}, s{sbase}, {j*1152}")
        a(f"buffer_load_dwordx4 {vr(W+4*j,4)}, v{vO}, {S(srdq)}, s{S_TMP} offen nt")

def wide_compute(a, units, ACC, BT, nk=8):
    for e in range(8):
        u, p = e >> 1, e & 1
        sel = S_SELHI if p else S_SELLO
        for ui, (W, Aop) in enumerate(units):
            bt = BT + ((e*len(units) + ui) & 1)*4
            for t in range(nk//2):
                lo = W + (2*t)*4 + u; hi = W + (2*t+1)*4 + u
                a(f"v_perm_b32 v{bt+t}, v{hi}, v{lo}, s{sel}")
            a.nop(2)
            c = "0" if ui == 0 else vr(ACC+4*e, 4)
            if nk == 8:
                a(f"v_mfma_f32_16x16x32_bf16 {vr(ACC+4*e,4)}, {vr(Aop,4)}, {vr(bt,4)}, {c}")
            else:
                a(f"v_mfma_f32_16x16x16_bf16 {vr(ACC+4*e,4)}, {vr(Aop,2)}, {vr(bt,2)}, {c}")

def wide_publish(a, ACC, PK, vFO, cb, nlanes_mask):
    for b in range(2):
        for e in range(8):
            a(f"v_min_u32 v{PK+8*b+e}, s{S_C1}, v{ACC+4*e+b}")
    a(f"s_mov_b64 exec, {nlanes_mask}")
    for b in range(2):
        a(f"s_add_u32 s{S_TMP}, s{S_B3}, {(b*18 + 4*cb)*NPROD*128}")
        a(f"buffer_store_dwordx4 {vr(PK+8*b,4)}, v{vFO}, {S(SWS)}, s{S_TMP} offen sc1")
        a(f"buffer_store_dwordx4 {vr(PK+8*b+4,4)}, v{vFO}, {S(SWS)}, s{S_TMP} offen offset:16 sc1")
    a("s_mov_b64 exec, -1")

def rho_sum(a, ACC, T):
    regs = [ACC+4*e+b for e in range(8) for b in range(2)]
    for i, r in enumerate(regs): a(f"v_mov_b32 v{T+i}, v{r}")
    a.nop(2)
    for i, r in enumerate(regs): a(f"v_permlane16_swap_b32 v{r}, v{T+i}")
    a.nop(2)
    for i, r in enumerate(regs): a(f"v_add_f32_dpp v{r}, v{T+i}, v{r} row_ror:8 row_mask:0xf bank_mask:0xf")

def gen():
    a = A()
    hdr = open("gated_mix__gqa_block_cached__swiglu_ffn__decode.s.ref").read().split("\n")
    pre = [l for l in hdr if l.startswith(";") and "@launch" not in l]
    out = pre + [f"; @launch grid=(256,1,1) block=(768,1,1) lds={LDS_BYTES}",
                 '.amdgcn_target "amdgcn-amd-amdhsa--gfx950"', ".text", f".globl {KN}", ".p2align 8",
                 f".type {KN},@function", f"{KN}:"]
    a("s_cmp_ge_u32 s2, 256\ns_cbranch_scc1 L_end")
    a("s_load_dwordx16 s[36:51], s[0:1], 0\ns_load_dwordx8 s[52:59], s[0:1], 64\ns_load_dwordx2 s[60:61], s[0:1], 96")
    a("v_lshrrev_b32 v1, 6, v0\nv_and_b32 v0, 63, v0\ns_nop 0")
    a(f"v_readfirstlane_b32 s{S_WAVE}, v1")
    a("v_mov_b32 v1, 0\nv_mov_b32 v2, 1")
    a(f"s_and_b32 s{S_U}, s2, 7\ns_lshr_b32 s{S_T}, s2, 3")
    a(f"s_lshr_b32 s{S_KVH}, s2, 4\ns_and_b32 s{S_SPL}, s2, 15")
    a(f"s_bfe_u32 s{S_CBQ}, s2, 0x20001\ns_lshl_b32 s{S_CBQ}, s{S_CBQ}, 1\ns_bfe_u32 s{S_TMP}, s2, 0x10003\ns_add_u32 s{S_CBQ}, s{S_CBQ}, s{S_TMP}\ns_lshl_b32 s{S_TMP}, s{S_KVH}, 3\ns_add_u32 s{S_CBQ}, s{S_CBQ}, s{S_TMP}")
    a(f"s_mov_b32 s{S_SELLO}, 0x05040100\ns_mov_b32 s{S_SELHI}, 0x07060302\ns_mov_b32 s{S_C1}, 0xfffffffe")
    l1 = a.new(); l2 = a.new(); l3 = a.new()
    a(f"s_cmp_lt_u32 s{S_T}, 18\ns_cbranch_scc0 {l1}")
    a(f"s_mov_b32 s{S_ROLE}, 0\ns_mul_i32 s{S_RIDX}, s{S_U}, 18\ns_add_u32 s{S_RIDX}, s{S_RIDX}, s{S_T}\ns_add_u32 s{S_PROD}, s{S_RIDX}, 64\ns_branch {l3}")
    a.lab(l1)
    a(f"s_cmp_lt_u32 s{S_T}, 26\ns_cbranch_scc0 {l2}")
    a(f"s_mov_b32 s{S_ROLE}, 1\ns_lshl_b32 s{S_RIDX}, s{S_U}, 3\ns_add_u32 s{S_RIDX}, s{S_RIDX}, s{S_T}\ns_sub_u32 s{S_RIDX}, s{S_RIDX}, 18\ns_mov_b32 s{S_PROD}, s{S_RIDX}\ns_branch {l3}")
    a.lab(l2)
    a(f"s_sub_u32 s{S_RIDX}, s{S_T}, 26\ns_lshl_b32 s{S_RIDX}, s{S_RIDX}, 3\ns_add_u32 s{S_RIDX}, s{S_RIDX}, s{S_U}\ns_mov_b32 s{S_PROD}, 0")
    a(f"s_cmp_lt_u32 s{S_RIDX}, 36\ns_cselect_b32 s{S_ROLE}, 2, 3")
    a.lab(l3)
    a(f"s_lshl_b32 s{S_B3}, s{S_PROD}, 7\ns_add_u32 s{S_B3}, s{S_B3}, {FP}")
    a("s_waitcnt lgkmcnt(0)")
    srd(a, SX, P_X, 2304)
    srd(a, SWS, P_WS, 0x10000000)
    srd(a, SDBG, P_DBG, 256)
    a(f"s_cmp_ge_u32 s{S_WAVE}, 4\ns_cbranch_scc1 L_att")
    a(f"s_cmp_eq_u32 s{S_WAVE}, 1\ns_cbranch_scc1 L_x1")
    a("s_setprio 3")
    a(f"s_mov_b32 s{S_C2}, s{S_WAVE}")
    lg = a.new()
    a(f"s_cmp_eq_u32 s{S_WAVE}, 0\ns_cbranch_scc0 {lg}")
    job_params_q(a)
    a("s_branch L_job")
    a.lab(lg)
    a(f"s_sub_u32 s{S_B0}, s{S_WAVE}, 2\ns_lshl_b32 s{S_B0}, s{S_B0}, 8\ns_add_u32 s{S_B0}, s{S_B0}, s2")
    job_params_gu(a, S_B0)
    a("s_barrier")
    if LATE:
        a(f"s_cmp_eq_u32 s{S_WAVE}, 3\ns_cbranch_scc0 L_job")
        if LATE == 1: wait_lds(a, F_GO, LATEN, 1, 10)
        else: wait_lds(a, F_PUB, 2, 1, 10)
    a("s_branch L_job")

    a.lab("L_x1")
    a("s_setprio 3")
    stamp(a, 0)
    a("v_lshlrev_b32 v3, 2, v0")
    a("ds_write_b32 v3, v1")
    if X1EARLY: a("s_waitcnt lgkmcnt(0)\ns_barrier")
    a("v_mov_b32 v16, -1\nv_mov_b32 v17, -1\nv_mov_b32 v18, -1\nv_mov_b32 v19, -1")
    a("v_lshrrev_b32 v4, 5, v0\nv_and_b32 v5, 31, v0\nv_lshlrev_b32 v5, 4, v5")
    def slot_init():
        a(f"v_mul_lo_u32 v6, v4, s{S_JBS}\nv_add_u32 v6, v6, v5")
        a(f"buffer_store_dwordx4 v[16:19], v6, {S(SWS)}, s{S_JO} offen sc1")
    job_params_q(a)
    slot_init()
    for k in range(2):
        a(f"s_add_u32 s{S_B0}, s2, {256*k}")
        job_params_gu(a, S_B0, want_srd=False)
        slot_init()
    ls = a.new()
    a(f"s_cmp_ge_u32 s2, 64\ns_cbranch_scc1 {ls}")
    a(f"s_add_u32 s{S_B0}, s2, 512")
    job_params_gu(a, S_B0, want_srd=False)
    slot_init()
    a.lab(ls)
    a("v_lshrrev_b32 v9, 4, v0\nv_lshlrev_b32 v9, 13, v9\nv_and_b32 v10, 15, v0\nv_lshl_add_u32 v9, v10, 4, v9")
    a(f"s_lshl_b32 s{S_B2}, s{S_KVH}, 15\ns_lshl_b32 s{S_TMP}, s{S_SPL}, 9\ns_add_u32 s{S_B2}, s{S_B2}, s{S_TMP}\ns_add_u32 s{S_B2}, s{S_B2}, {OP}")
    a(f"buffer_store_dwordx4 v[16:19], v9, {S(SWS)}, s{S_B2} offen sc1")
    a(f"buffer_store_dwordx4 v[16:19], v9, {S(SWS)}, s{S_B2} offen offset:256 sc1")
    a("v_lshlrev_b32 v9, 8, v0")
    a(f"s_lshl_b32 s{S_B2}, s{S_KVH}, 9\ns_lshl_b32 s{S_TMP}, s{S_SPL}, 4\ns_add_u32 s{S_B2}, s{S_B2}, s{S_TMP}\ns_add_u32 s{S_B2}, s{S_B2}, {ST}")
    a("s_mov_b64 exec, 3")
    a(f"buffer_store_dwordx4 v[16:19], v9, {S(SWS)}, s{S_B2} offen sc1")
    a("s_mov_b64 exec, -1")
    lskip = a.new()
    a(f"s_cmp_gt_u32 s{S_ROLE}, 1\ns_cbranch_scc1 {lskip}")
    a(f"v_lshrrev_b32 v9, 3, v0\ns_mov_b32 s{S_TMP}, {NPROD*128}\nv_mul_lo_u32 v9, v9, s{S_TMP}\nv_and_b32 v10, 7, v0\nv_lshl_add_u32 v9, v10, 4, v9")
    for i in range(5):
        if i == 4: a("s_mov_b32 exec_lo, -1\ns_mov_b32 exec_hi, 0")
        a(f"s_add_u32 s{S_TMP}, s{S_B3}, {i*8*NPROD*128}")
        a(f"buffer_store_dwordx4 v[16:19], v9, {S(SWS)}, s{S_TMP} offen sc1")
    a("s_mov_b64 exec, -1")
    a.lab(lskip)
    a(f"s_lshl_b32 s{S_B2}, s2, 7\ns_add_u32 s{S_B2}, s{S_B2}, {NB}")
    a("s_mov_b64 exec, 1")
    a(f"buffer_store_dword v16, v1, {S(SWS)}, s{S_B2} offen sc1")
    a("s_mov_b64 exec, -1")
    if not X1EARLY: a("s_waitcnt lgkmcnt(0)\ns_barrier")
    a("s_waitcnt vmcnt(0)")
    lds_inc(a, F_INIT, 1, 2)
    a(f"s_lshl_b32 s{S_TMP}, s{S_KVH}, 4\ns_add_u32 s{S_FP}, s{P_DBG}, s{S_TMP}\ns_addc_u32 s{S_FP+1}, s{P_DBG+1}, 0")
    a(f"s_mov_b32 s{S_FV}, 1\ns_atomic_add s{S_FV}, s[{S_FP}:{S_FP+1}], 0 glc")
    a("s_waitcnt lgkmcnt(0)")
    ln = a.new(); d = a.new("GD"); l = a.new("G"); lv = a.new("GV"); lc = a.new("GC")
    a(f"s_and_b32 s{S_FV}, s{S_FV}, 15\ns_cmp_eq_u32 s{S_FV}, 15\ns_cbranch_scc0 {ln}")
    a(f"s_lshl_b32 s{S_TMP}, s{S_KVH}, 11\ns_add_u32 s{S_TMP}, s{S_TMP}, {NB}\ns_add_u32 s{S_FP}, s{P_WS}, s{S_TMP}\ns_addc_u32 s{S_FP+1}, s{P_WS+1}, 0\ns_mov_b32 s{S_FV}, 2")
    for k in range(16):
        a(f"s_atomic_add s{S_FV}, s[{S_FP}:{S_FP+1}], {128*k}")
    a(f"s_branch {d}")
    a.lab(ln)
    a(f"s_add_u32 s{S_FP}, s{P_WS}, s{S_B2}\ns_addc_u32 s{S_FP+1}, s{P_WS+1}, 0\ns_mov_b32 s{S_CNT}, 0")
    a.lab(l)
    a(f"s_cmp_gt_u32 s{S_CNT}, 64\ns_cbranch_scc1 {lv}")
    a(f"s_load_dword s{S_TMP}, s[{S_FP}:{S_FP+1}], 0 glc")
    a("s_waitcnt lgkmcnt(0)")
    a(f"s_branch {lc}")
    a.lab(lv)
    a(f"buffer_load_dword v9, v1, {S(SWS)}, s{S_B2} offen sc1")
    a("s_waitcnt vmcnt(0)")
    a(f"v_readfirstlane_b32 s{S_TMP}, v9")
    a.lab(lc)
    a(f"s_cmp_eq_u32 s{S_TMP}, 1\ns_cbranch_scc1 {d}")
    a(f"s_add_u32 s{S_CNT}, s{S_CNT}, 1\ns_cmp_gt_u32 s{S_CNT}, {SPIN_LIMIT}\ns_cbranch_scc1 {d}")
    a(f"s_sleep 2\ns_branch {l}")
    a.lab(d)
    stamp(a, 2)
    if QPRE:
        pl = a.new("Q"); pd = a.new("QD")
        a(f"s_lshl_b32 s{S_TMP}, s{S_KVH}, 10\ns_add_u32 s{S_TMP}, s{S_TMP}, {QP}\ns_add_u32 s{S_FP}, s{P_WS}, s{S_TMP}\ns_addc_u32 s{S_FP+1}, s{P_WS+1}, 0\ns_mov_b32 s{S_CNT}, 0")
        a.lab(pl)
        R = [36, 37, 38, 39, 40, 41, 42, 43, 46, 47, 92, 93, 94, 95, 86, 87]
        for ks in range(8):
            for c in range(2):
                a(f"s_load_dword s{R[ks*2+c]}, s[{S_FP}:{S_FP+1}], {ks*32768 + 16384 + c*512 + 508} glc")
        a("s_waitcnt lgkmcnt(0)")
        for k in range(1, 16): a(f"s_max_u32 s36, s36, s{R[k]}")
        a(f"s_cmp_lg_u32 s36, -1\ns_cbranch_scc1 {pd}")
        a(f"s_add_u32 s{S_CNT}, s{S_CNT}, 1\ns_cmp_gt_u32 s{S_CNT}, 40\ns_cbranch_scc1 {pd}")
        a(f"s_sleep 4\ns_branch {pl}")
        a.lab(pd)
    a("v_lshlrev_b32 v9, 4, v0")
    a(f"s_lshl_b32 s{S_B2}, s{S_KVH}, 10\ns_add_u32 s{S_B2}, s{S_B2}, {QP}")
    def ld():
        for ks in range(8):
            for b in range(2):
                a(f"s_add_u32 s{S_TMP}, s{S_B2}, {ks*32768 + b*16384}")
                a(f"buffer_load_dwordx4 {vr(16+(ks*2+b)*4,4)}, v9, {S(SWS)}, s{S_TMP} offen sc1")
        lds_inc(a, F_GI, 1, 2)
    poll_loop(a, ld, range(16, 80), 10, sleep=4)
    for st in (32, 16, 8):
        for r in range(16, 16 + st): a(f"v_add_f32 v{r}, v{r}, v{r+st}")
    for b in range(2):
        a(f"v_cvt_pk_bf16_f32 v{48+2*b}, v{16+b*4}, v{17+b*4}\nv_cvt_pk_bf16_f32 v{49+2*b}, v{18+b*4}, v{19+b*4}")
    a("v_lshlrev_b32 v9, 3, v0")
    a(f"ds_write_b64 v9, v[48:49] offset:{QL}\nds_write_b64 v9, v[50:51] offset:{QL+512}")
    a("s_waitcnt lgkmcnt(0)")
    lds_inc(a, F_Q, 1, 2)
    stamp(a, 3)
    a("s_branch L_aux2")
    a.lab("L_job")
    job_body(a)
    a(f"s_cmp_lg_u32 s{S_C2}, 0\ns_cbranch_scc1 L_aux2")
    stamp(a, 1)
    a("s_cmp_ge_u32 s2, 64\ns_cbranch_scc1 L_aux2")
    a(f"s_mov_b32 s{S_C2}, 1\ns_add_u32 s{S_B0}, s2, 512")
    job_params_gu(a, S_B0)
    a("s_branch L_job")

    a.lab("L_aux2")
    a("s_setprio 0")
    a(f"s_cmp_eq_u32 s{S_ROLE}, 0\ns_cbranch_scc1 L_ffn")
    a(f"s_cmp_eq_u32 s{S_ROLE}, 1\ns_cbranch_scc1 L_wo")
    a(f"s_cmp_eq_u32 s{S_ROLE}, 2\ns_cbranch_scc1 L_red0")
    a("s_endpgm")
    a.lab("L_red0")
    a(f"s_cmp_eq_u32 s{S_WAVE}, 3\ns_cbranch_scc0 L_red")
    srd(a, SA, P_GW, 1152)
    a("v_and_b32 v3, 31, v0\nv_mul_u32_u24 v3, 36, v3\nv_lshrrev_b32 v4, 5, v0\nv_mul_u32_u24 v4, 1152, v4\nv_add_u32 v4, v4, v3")
    for i in range(9):
        a(f"buffer_load_dword v{16+i}, v4, {S(SX)}, 0 offen offset:{4*i}")
        a(f"buffer_load_dword v{32+i}, v3, {S(SA)}, 0 offen offset:{4*i}")
    a("v_mov_b32 v5, 0\ns_waitcnt vmcnt(0)")
    for i in range(9):
        a(f"v_lshlrev_b32 v6, 16, v{16+i}\nv_and_b32 v7, 0xffff0000, v{16+i}\nv_lshlrev_b32 v8, 16, v{32+i}\nv_and_b32 v9, 0xffff0000, v{32+i}")
        a("v_mul_f32 v6, v6, v8\nv_mul_f32 v7, v7, v9\nv_cvt_pk_bf16_f32 v6, v6, v7")
        a("v_lshlrev_b32 v7, 16, v6\nv_and_b32 v6, 0xffff0000, v6\nv_add_f32 v5, v5, v7\nv_add_f32 v5, v5, v6")
    for k in (1, 2, 4, 8):
        a.nop(2)
        a(f"v_add_f32_dpp v5, v5, v5 row_ror:{k} row_mask:0xf bank_mask:0xf")
    a("v_mov_b32 v6, v5")
    a.nop(2)
    a("v_permlane16_swap_b32 v5, v6")
    a.nop(1)
    a("v_add_f32 v5, v5, v6")
    a("v_cvt_pk_bf16_f32 v5, v5, v5\nv_and_b32 v5, 0xffff0000, v5")
    a("v_mul_f32 v6, 0xbfb8aa3b, v5\nv_exp_f32 v6, v6\ns_nop 0\nv_add_f32 v6, 1.0, v6\nv_rcp_f32 v6, v6\ns_nop 0")
    a("v_cvt_pk_bf16_f32 v6, v6, v6\nv_and_b32 v6, 0xffff0000, v6")
    a("v_lshrrev_b32 v7, 5, v0\nv_lshlrev_b32 v7, 2, v7")
    a(f"ds_write_b32 v7, v6 offset:{GATEL}")
    a("s_waitcnt lgkmcnt(0)")
    lds_inc(a, F_GATE, 1, 2)
    a("s_branch L_red")

    a.lab("L_ffn")
    WD = 88; XA = 120
    vOW, vFO, vOH = 167, 164, 165
    def att_done():
        wait_lds(a, F_PUB, 2, 1, 10)
    lh = a.new()
    a(f"s_branch {lh}")
    a.lab("L_h")
    all_groups_wait(a, 9)
    a(f"v_lshrrev_b32 v9, 5, v0\ns_mov_b32 s{S_TMP}, 18432\nv_mul_lo_u32 v9, v9, s{S_TMP}\nv_and_b32 v10, 31, v0\nv_lshl_add_u32 v9, v10, 2, v9")
    a(f"s_lshl_b32 s{S_B2}, s{S_RIDX}, 7\ns_add_u32 s{S_B2}, s{S_B2}, {GUP}")
    def ldh():
        for k in range(16):
            a(f"s_add_u32 s{S_TMP}, s{S_B2}, {k*2*18432}")
            a(f"buffer_load_dword v{16+k}, v9, {S(SWS)}, s{S_TMP} offen sc1")
    poll_loop(a, ldh, range(16, 32), 10, sleep=HSLEEP)
    for base in (16, 24):
        for st in (4, 2, 1):
            for r in range(base, base + st): a(f"v_add_f32 v{r}, v{r}, v{r+st}")
    a("v_mov_b32 v20, v24")
    a("v_cvt_pk_bf16_f32 v16, v16, v20\nv_and_b32 v20, 0xffff0000, v16\nv_lshlrev_b32 v16, 16, v16")
    a("v_mul_f32 v17, 0xbfb8aa3b, v16\nv_exp_f32 v17, v17\ns_nop 0\nv_add_f32 v17, 1.0, v17\nv_rcp_f32 v17, v17\ns_nop 0\nv_mul_f32 v17, v16, v17")
    a("v_cvt_pk_bf16_f32 v17, v17, v17\nv_and_b32 v17, 0xffff0000, v17\nv_mul_f32 v17, v17, v20\nv_cvt_pk_bf16_f32 v17, v17, v17")
    a("v_lshlrev_b32 v7, 1, v0")
    a(f"ds_write_b16 v7, v17 offset:{HL}")
    a("s_waitcnt lgkmcnt(0)")
    lds_inc(a, F_H, 1, 2)
    stamp(a, 13)
    a("s_endpgm")
    a.lab(lh)
    srd(a, SB, P_WD, 4608*1152)
    a(f"v_lshrrev_b32 v7, 4, v0\nv_mul_u32_u24 v{vOW}, {8*1152}, v7\nv_and_b32 v8, 15, v0\nv_lshl_add_u32 v{vOW}, v8, 4, v{vOW}")
    cb_masks(a)
    a(f"v_bfe_u32 v7, v0, 2, 2\ns_mov_b32 s{S_TMP}, {NPROD*128}\nv_mul_lo_u32 v{vFO}, v7, s{S_TMP}\nv_and_b32 v8, 3, v0\nv_lshl_add_u32 v{vFO}, v8, 5, v{vFO}")
    a(f"s_mul_i32 s{S_B0}, s{S_RIDX}, {32*1152}")
    a(f"s_lshl_b32 s{S_TMP}, s{S_WAVE}, 8\ns_add_u32 s{S_B2}, s{S_B0}, s{S_TMP}")
    a(f"s_mul_i32 s{S_TMP2}, s{S_WAVE}, {4*NPROD*128}\ns_add_u32 s{S_B3}, s{S_B3}, s{S_TMP2}")
    a(f"v_and_b32 v8, 1, v0\nv_lshlrev_b32 v8, 6, v8\nv_lshrrev_b32 v9, 4, v0\nv_lshl_add_u32 v11, v9, 4, v8")
    if GOF == 0: wait_lds(a, F_GO, 8, 1, 10)
    else: att_done()
    stamp(a, 4)
    a(f"s_mov_b64 exec, s[{S_LM}:{S_LM+1}]")
    wide_loads(a, SB, S_B2, WD, vOW, win=WDW)
    a("s_mov_b64 exec, -1")
    ACCW = 16; PK = 48; P0 = 128
    a("s_waitcnt vmcnt(0)")
    wide_perm(a, WD, P0)
    wait_lds(a, F_H, 1, 1, 10)
    a(f"ds_read_b128 {vr(XA,4)}, v11 offset:{HL}")
    a("s_waitcnt lgkmcnt(0)")
    for e in range(8):
        a(f"v_mfma_f32_16x16x32_bf16 {vr(ACCW+4*e,4)}, {vr(XA,4)}, {vr(P0+4*e,4)}, 0")
    a.nop(1)
    wide_publish(a, ACCW, PK, vFO, 0, f"s[{S_PM}:{S_PM+1}]")
    stamp(a, 5)
    a("s_endpgm")

    a.lab("L_wo")
    W0 = 16; W1 = 48; P0 = 80; P1 = 16; OA = 144; ACCW = 112; PK = 48
    vOW, vFO = 164, 165
    srd(a, SB, P_WO, 4096*1152)
    cb_masks(a)
    a(f"v_lshrrev_b32 v7, 4, v0\nv_mul_u32_u24 v{vOW}, {8*1152}, v7\nv_and_b32 v8, 15, v0\nv_lshl_add_u32 v{vOW}, v8, 4, v{vOW}")
    a(f"v_bfe_u32 v7, v0, 2, 2\ns_mov_b32 s{S_TMP}, {NPROD*128}\nv_mul_lo_u32 v{vFO}, v7, s{S_TMP}\nv_and_b32 v8, 3, v0\nv_lshl_add_u32 v{vFO}, v8, 5, v{vFO}")
    a(f"s_mul_i32 s{S_B0}, s{S_RIDX}, {64*1152}")
    a(f"s_lshl_b32 s{S_TMP}, s{S_WAVE}, 8\ns_add_u32 s{S_B2}, s{S_B0}, s{S_TMP}\ns_add_u32 s{S_B1}, s{S_B2}, {32*1152}")
    a(f"s_mul_i32 s{S_TMP2}, s{S_WAVE}, {4*NPROD*128}\ns_add_u32 s{S_B3}, s{S_B3}, s{S_TMP2}")
    if WOW: wait_lds(a, F_GO, 8, 1, 10)
    else: att_done()
    a(f"s_mov_b64 exec, s[{S_LM}:{S_LM+1}]")
    wide_loads(a, SB, S_B2, W0, vOW, win=WOW)
    wide_loads(a, SB, S_B1, W1, vOW, win=WOW, n0=8)
    a("s_mov_b64 exec, -1")
    a(f"v_and_b32 v8, 1, v0\nv_lshlrev_b32 v8, 7, v8\nv_lshrrev_b32 v9, 4, v0\nv_lshl_add_u32 v8, v9, 4, v8")
    a("s_waitcnt vmcnt(8)")
    wide_perm(a, W0, P0)
    a("s_waitcnt vmcnt(0)")
    wide_perm(a, W1, P1)
    wait_lds(a, F_O, 1, 1, 10)
    a(f"ds_read_b128 {vr(OA,4)}, v8 offset:{OL}\nds_read_b128 {vr(OA+4,4)}, v8 offset:{OL+64}")
    a("s_waitcnt lgkmcnt(0)")
    for e in range(8):
        a(f"v_mfma_f32_16x16x32_bf16 {vr(ACCW+4*e,4)}, {vr(OA,4)}, {vr(P0+4*e,4)}, 0")
    for e in range(8):
        a(f"v_mfma_f32_16x16x32_bf16 {vr(ACCW+4*e,4)}, {vr(OA+4,4)}, {vr(P1+4*e,4)}, {vr(ACCW+4*e,4)}")
    a.nop(1)
    wide_publish(a, ACCW, PK, vFO, 0, f"s[{S_PM}:{S_PM+1}]")
    stamp(a, 6)
    a("s_endpgm")

    a.lab("L_red")
    srd(a, SOUT, P_OUT, 2304)
    a("v_lshlrev_b32 v9, 4, v0")
    a(f"s_mul_i32 s{S_B2}, s{S_RIDX}, {NPROD*128}\ns_add_u32 s{S_B2}, s{S_B2}, {FP}")
    wait_lds(a, F_Q, 1, 1, 10)
    wait_lds(a, F_CB0, 4, 1, 10)
    wait_lds(a, F_CB1, 4, 1, 10)
    all_groups_wait(a, 11)
    lb = a.new(); lj = a.new()
    a(f"s_cmp_eq_u32 s{S_WAVE}, 0\ns_cbranch_scc0 {lb}")
    def mk(n):
        def ld():
            for i in range(n):
                a(f"s_add_u32 s{S_TMP}, s{S_B2}, {i*1024}")
                a(f"buffer_load_dwordx4 {vr(16+4*i,4)}, v9, {S(SWS)}, s{S_TMP} offen sc1")
        return ld
    poll_loop(a, mk(1), range(16, 20), 10, sleep=RSLEEP0)
    poll_loop(a, mk(8), range(16, 48), 10, sleep=RSLEEP)
    for i in (6, 7):
        for k in range(4): a(f"v_add_f32 v{16+4*(i-6)+k}, v{16+4*(i-6)+k}, v{16+4*i+k}")
    a(f"s_branch {lj}")
    a.lab(lb)
    a(f"s_mul_i32 s{S_TMP}, s{S_WAVE}, {48*128}\ns_add_u32 s{S_B2}, s{S_B2}, s{S_TMP}\ns_add_u32 s{S_B2}, s{S_B2}, {(64-48)*128}")
    poll_loop(a, mk(1), range(16, 20), 10, sleep=RSLEEP0)
    poll_loop(a, mk(6), range(16, 40), 10, sleep=RSLEEP)
    a.lab(lj)
    for k in range(4):
        a(f"v_add_f32 v{16+k}, v{16+k}, v{20+k}\nv_add_f32 v{24+k}, v{24+k}, v{28+k}\nv_add_f32 v{32+k}, v{32+k}, v{36+k}")
    for k in range(4):
        a(f"v_add_f32 v{16+k}, v{16+k}, v{24+k}")
    for k in range(4):
        a(f"v_add_f32 v{16+k}, v{16+k}, v{32+k}")
    a.nop(2)
    for k in range(4):
        a(f"v_add_f32_dpp v{16+k}, v{16+k}, v{16+k} row_ror:8 row_mask:0xf bank_mask:0xf")
    for sw in ("v_permlane16_swap_b32", "v_permlane32_swap_b32"):
        for k in range(4): a(f"v_mov_b32 v{20+k}, v{16+k}")
        a.nop(2)
        for k in range(4): a(f"{sw} v{16+k}, v{20+k}")
        a.nop(1)
        for k in range(4): a(f"v_add_f32 v{16+k}, v{16+k}, v{20+k}")
    a(f"s_lshl_b32 s{S_TMP}, s{S_WAVE}, 7\nv_add_u32 v9, s{S_TMP}, v9")
    a("s_mov_b64 exec, 0xff")
    a(f"ds_write_b128 v9, v[16:19] offset:{REDL}")
    a(f"s_lshl_b32 s{S_TMP2}, 1, s{S_WAVE}\nv_mov_b32 v11, s{S_TMP2}")
    a("s_mov_b64 exec, 1")
    a(f"ds_or_rtn_b32 v10, v1, v11 offset:{F_RED}")
    a("s_mov_b64 exec, -1")
    a("s_waitcnt lgkmcnt(0)")
    a(f"v_readfirstlane_b32 s{S_TMP}, v10")
    a(f"s_cmp_eq_u32 s{S_TMP}, 15\ns_cbranch_scc1 L_end")
    a(f"s_or_b32 s{S_TMP}, s{S_TMP}, s{S_TMP2}\ns_cmp_eq_u32 s{S_TMP}, 15\ns_cbranch_scc0 L_end")
    wait_lds(a, F_GATE, 1, 1, 10)
    a("v_lshlrev_b32 v9, 2, v0")
    a(f"ds_read_b32 v16, v9 offset:{REDL}\nds_read_b32 v17, v9 offset:{REDL+128}\nds_read_b32 v18, v9 offset:{REDL+256}\nds_read_b32 v19, v9 offset:{REDL+384}")
    a(f"s_cmp_ge_u32 s{S_RIDX}, 18\ns_cselect_b32 s{S_TMP}, 4, 0\nv_mov_b32 v11, s{S_TMP}")
    a(f"ds_read_b32 v20, v11 offset:{GATEL}")
    a("s_waitcnt lgkmcnt(0)")
    a("v_add_f32 v17, v17, v18\nv_add_f32 v17, v17, v19")
    a("v_sub_f32 v21, 1.0, v20")
    a("v_cvt_pk_bf16_f32 v16, v16, v17\nv_cvt_pk_bf16_f32 v21, v21, v21")
    a("v_and_b32 v17, 0xffff0000, v16\nv_lshlrev_b32 v16, 16, v16\nv_and_b32 v21, 0xffff0000, v21")
    a("v_mul_f32 v16, v20, v16\nv_mul_f32 v17, v21, v17\nv_cvt_pk_bf16_f32 v16, v16, v17")
    a("v_and_b32 v17, 0xffff0000, v16\nv_lshlrev_b32 v16, 16, v16\nv_add_f32 v16, v16, v17\nv_cvt_pk_bf16_f32 v16, v16, v16")
    a(f"v_lshlrev_b32 v9, 1, v0\ns_lshl_b32 s{S_TMP}, s{S_RIDX}, 6")
    a("s_mov_b32 exec_lo, -1\ns_mov_b32 exec_hi, 0")
    a(f"buffer_store_short v16, v9, {S(SOUT)}, s{S_TMP} offen")
    stamp(a, 7)
    if DIAG2:
        a("s_mov_b64 exec, -1")
        a(f"s_cmp_eq_u32 s{S_RIDX}, 0\ns_cbranch_scc0 L_end")
        for _ in range(6): a("s_sleep 127")
        a(f"s_sub_u32 s{S_C2}, s{S_ST0}, 20000")
        a(f"v_lshlrev_b32 v9, 6, v0\ns_mov_b32 s{S_B2}, {STAMPO}")
        for q in range(4):
            a(f"s_add_u32 s{S_TMP}, s{S_B2}, {q*4096}")
            for k in range(3):
                a(f"buffer_load_dwordx4 {vr(16+q*12+k*4,4)}, v9, {S(SWS)}, s{S_TMP} offen offset:{16*k} sc1")
        a("s_waitcnt vmcnt(0)")
        a(f"s_mov_b32 s{S_TMP}, 100000")
        for r in range(16, 64):
            a(f"v_subrev_u32 v{r}, s{S_C2}, v{r}")
            a(f"v_cmp_gt_u32 vcc, s{S_TMP}, v{r}")
            a("s_nop 1")
            a(f"v_sub_u32 v{r+48}, s{S_TMP}, v{r}")
            a(f"v_cndmask_b32 v{r}, 0, v{r}, vcc")
            a(f"v_cndmask_b32 v{r+48}, 0, v{r+48}, vcc")
        outs = [(16, i) for i in range(10)] + [(64, i) for i in (0, 2, 3, 8, 5, 7)]
        for o, (base, i) in enumerate(outs):
            a(f"v_max3_u32 v{120+o}, v{base+i}, v{base+12+i}, v{base+24+i}")
            a(f"v_max_u32 v{120+o}, v{120+o}, v{base+36+i}")
        for k in (1, 2, 4, 8):
            a.nop(2)
            for o in range(16): a(f"v_max_u32_dpp v{120+o}, v{120+o}, v{120+o} row_ror:{k} row_mask:0xf bank_mask:0xf")
        for sw in ("v_permlane16_swap_b32", "v_permlane32_swap_b32"):
            for o in range(16): a(f"v_mov_b32 v{140+o}, v{120+o}")
            a.nop(2)
            for o in range(16): a(f"{sw} v{120+o}, v{140+o}")
            a.nop(1)
            for o in range(16): a(f"v_max_u32 v{120+o}, v{120+o}, v{140+o}")
        for o in range(10, 16): a(f"v_sub_u32 v{120+o}, s{S_TMP}, v{120+o}")
        a("s_mov_b64 exec, 1")
        for k in range(4): a(f"buffer_store_dwordx4 {vr(120+4*k,4)}, v1, {S(SDBG)}, 0 offen offset:{16*k}")
    a("s_endpgm")

    a.lab("L_att")
    KR = 16; VRG = 80; QB = 144; S01 = 160
    srd(a, SA, P_K, 0x2000000)
    srd(a, SB, P_V, 0x2000000)
    a(f"s_sub_u32 s{S_B0}, s{S_WAVE}, 4\ns_and_b32 s{S_B1}, s{S_B0}, 1\ns_lshr_b32 s{S_B2}, s{S_B0}, 1")
    a(f"s_lshl_b32 s{S_TMP}, s{S_B1}, 4\ns_add_u32 s{S_TMP}, s{S_TMP}, s{S_KVH}\ns_lshl_b32 s{S_C2}, s{S_TMP}, 20")
    if SPREAD:
        a(f"s_lshl_b32 s{S_TMP}, s{S_SPL}, 12\ns_add_u32 s{S_C2}, s{S_C2}, s{S_TMP}\ns_lshl_b32 s{S_TMP}, s{S_B2}, 16\ns_add_u32 s{S_C2}, s{S_C2}, s{S_TMP}")
    else:
        a(f"s_lshl_b32 s{S_TMP}, s{S_SPL}, 16\ns_add_u32 s{S_C2}, s{S_C2}, s{S_TMP}\ns_lshl_b32 s{S_TMP}, s{S_B2}, 14\ns_add_u32 s{S_C2}, s{S_C2}, s{S_TMP}")
    TS = 262144 if SPREAD else 4096
    a("v_and_b32 v3, 15, v0\nv_lshrrev_b32 v4, 4, v0")
    a("v_lshlrev_b32 v5, 8, v3\nv_lshl_add_u32 v5, v4, 4, v5")
    a("v_lshlrev_b32 v6, 10, v4\nv_lshl_add_u32 v6, v3, 4, v6")
    n = 0
    for T in range(4):
        a(f"s_add_u32 s{S_TMP}, s{S_C2}, {T*TS}")
        for j in range(4):
            if n == BARN:
                a("s_barrier")
                stamp_a0(a, 14)
            if WIN and n >= WIN: a(f"s_waitcnt vmcnt({WIN-1})")
            n += 1
            a(f"buffer_load_dwordx4 {vr(KR+(T*4+j)*4,4)}, v5, {S(SA)}, s{S_TMP} offen offset:{j*64} nt")
    if KHOLD < 16:
        a(f"s_waitcnt vmcnt({KHOLD})")
        wait_lds(a, F_GI, 1, 1, 12, limit=GISPIN)
    for T in range(4):
        a(f"s_add_u32 s{S_TMP}, s{S_C2}, {T*TS}")
        for r in range(4):
            if WIN and n >= WIN: a(f"s_waitcnt vmcnt({WIN-1})")
            n += 1
            a(f"buffer_load_dwordx4 {vr(VRG+(T*4+r)*4,4)}, v6, {S(SB)}, s{S_TMP} offen offset:{r*256} nt")
    lds_inc(a, F_GO, 1, 2)
    stamp_a0(a, 10)
    a("v_and_b32 v7, 1, v0\nv_lshlrev_b32 v7, 4, v7\nv_mov_b32 v12, 0xffff\nv_lshlrev_b32 v12, v7, v12\nv_bfe_u32 v7, v0, 1, 2")
    for u in range(4):
        a(f"v_cmp_eq_u32 vcc, {u}, v7\ns_nop 1\nv_cndmask_b32 v{8+u}, 0, v12, vcc")
    a(f"v_bfe_u32 v7, v0, 3, 1\nv_lshlrev_b32 v7, 8, v7\nv_lshl_add_u32 v7, v4, 4, v7\ns_lshl_b32 s{S_TMP}, s{S_B1}, 9\nv_add_u32 v7, s{S_TMP}, v7")
    wait_lds(a, F_Q, 1, 1, 12)
    for j in range(4):
        a(f"ds_read_b128 {vr(QB+4*j,4)}, v7 offset:{QL+64*j}")
    a("s_waitcnt lgkmcnt(0)")
    SR = [S01, S01+4, KR, KR+4]
    for T in range(4):
        a(f"s_waitcnt vmcnt({16 + 12 - 4*T})")
        for j in range(4):
            c = "0" if j == 0 else vr(SR[T], 4)
            a(f"v_mfma_f32_16x16x32_bf16 {vr(SR[T],4)}, {vr(KR+(T*4+j)*4,4)}, {vr(QB+4*j,4)}, {c}")
    a.nop(8)
    sreg = [SR[T]+r for T in range(4) for r in range(4)]
    a(f"s_mov_b32 s{S_TMP}, 0x3db504f3\ns_mov_b32 s{S_TMP2}, 0x3fb8aa3b")
    for i in range(0, 16, 2):
        x, y = sreg[i], sreg[i+1]
        a(f"v_cvt_pk_bf16_f32 v12, v{x}, v{y}\nv_lshlrev_b32 v{x}, 16, v12\nv_and_b32 v{y}, 0xffff0000, v12")
        a(f"v_mul_f32 v{x}, s{S_TMP}, v{x}\nv_mul_f32 v{y}, s{S_TMP}, v{y}")
        a(f"v_cvt_pk_bf16_f32 v12, v{x}, v{y}\nv_lshlrev_b32 v{x}, 16, v12\nv_and_b32 v{y}, 0xffff0000, v12")
    a(f"v_max3_f32 v12, v{sreg[0]}, v{sreg[1]}, v{sreg[2]}")
    for i in range(3, 15, 2):
        a(f"v_max3_f32 v12, v12, v{sreg[i]}, v{sreg[i+1]}")
    a(f"v_max_f32 v12, v12, v{sreg[15]}")
    for sw in ("v_permlane16_swap_b32", "v_permlane32_swap_b32"):
        a("v_mov_b32 v13, v12")
        a.nop(2)
        a(f"{sw} v12, v13")
        a.nop(1)
        a("v_max_f32 v12, v12, v13")
    a(f"v_mul_f32 v12, s{S_TMP2}, v12")
    for r in sreg:
        a(f"v_fma_f32 v{r}, v{r}, s{S_TMP2}, -v12")
    for r in sreg:
        a(f"v_exp_f32 v{r}, v{r}")
    a.nop(1)
    a(f"v_add_f32 v13, v{sreg[0]}, v{sreg[1]}")
    for r in sreg[2:]:
        a(f"v_add_f32 v13, v13, v{r}")
    AP = [24+4*i for i in range(14)] + [QB, QB+4]
    for i, r in enumerate(sreg):
        a(f"v_cvt_pk_bf16_f32 v14, v{r}, v{r}")
        for u in range(4):
            a(f"v_and_b32 v{AP[i]+u}, v14, v{8+u}")
    for sw in ("v_permlane16_swap_b32", "v_permlane32_swap_b32"):
        a("v_mov_b32 v14, v13")
        a.nop(2)
        a(f"{sw} v13, v14")
        a.nop(1)
        a("v_add_f32 v13, v13, v14")
    a(f"v_bfe_u32 v14, v0, 3, 1\nv_lshlrev_b32 v14, 3, v14\ns_lshl_b32 s{S_TMP}, s{S_B0}, 4\nv_add_u32 v14, s{S_TMP}, v14")
    a("s_mov_b64 exec, 0x101")
    a(f"ds_write_b64 v14, v[12:13] offset:{STL}")
    a("s_mov_b64 exec, -1")
    OACC = [QB+8, QB+12]
    stamp_a0(a, 11)
    for i in range(16):
        a(f"s_waitcnt vmcnt({15-i})")
        c = "0" if i < 2 else vr(OACC[i & 1], 4)
        a(f"v_mfma_f32_16x16x32_bf16 {vr(OACC[i&1],4)}, {vr(AP[i],4)}, {vr(VRG+4*i,4)}, {c}")
    a(f"v_lshrrev_b32 v14, 5, v0\nv_lshlrev_b32 v14, 9, v14\nv_lshl_add_u32 v14, v3, 5, v14\nv_and_b32 v15, 1, v4\nv_lshl_add_u32 v14, v15, 4, v14\ns_lshl_b32 s{S_TMP}, s{S_B0}, 10\nv_add_u32 v14, s{S_TMP}, v14")
    a.nop(3)
    for k in range(4):
        a(f"v_add_f32 v{16+k}, v{OACC[0]+k}, v{OACC[1]+k}")
    a(f"ds_write_b128 v14, v[16:19] offset:{OB}")
    stamp_a0(a, 12)
    a(f"s_lshl_b32 s{S_TMP}, s{S_B1}, 2\nv_mov_b32 v15, s{S_TMP}")
    a("s_mov_b64 exec, 1")
    a(f"ds_add_rtn_u32 v14, v15, v2 offset:{F_CB0}")
    a("s_mov_b64 exec, -1")
    a("s_waitcnt lgkmcnt(0)")
    a(f"v_readfirstlane_b32 s{S_TMP}, v14")
    a(f"s_cmp_eq_u32 s{S_TMP}, 3\ns_cbranch_scc0 L_att_done")
    a(f"v_lshrrev_b32 v14, 5, v0\nv_lshlrev_b32 v15, 3, v14\ns_lshl_b32 s{S_TMP}, s{S_B1}, 4\nv_add_u32 v15, s{S_TMP}, v15")
    for wi in range(4):
        a(f"ds_read_b64 {vr(16+2*wi,2)}, v15 offset:{STL+32*wi}")
    a(f"v_lshlrev_b32 v15, 9, v14\nv_and_b32 v13, 31, v0\nv_lshl_add_u32 v15, v13, 4, v15\ns_lshl_b32 s{S_TMP}, s{S_B1}, 10\nv_add_u32 v15, s{S_TMP}, v15")
    for wi in range(4):
        a(f"ds_read_b128 {vr(24+4*wi,4)}, v15 offset:{OB+2048*wi}")
    a("s_waitcnt lgkmcnt(4)")
    a("v_max3_f32 v40, v16, v18, v20\nv_max_f32 v40, v40, v22")
    for wi in range(4):
        a(f"v_sub_f32 v{16+2*wi}, v{16+2*wi}, v40")
    for wi in range(4):
        a(f"v_exp_f32 v{16+2*wi}, v{16+2*wi}")
    a.nop(1)
    a("v_mul_f32 v41, v16, v17\nv_fmac_f32 v41, v18, v19\nv_fmac_f32 v41, v20, v21\nv_fmac_f32 v41, v22, v23")
    a("s_waitcnt lgkmcnt(0)")
    for k in range(4):
        a(f"v_mul_f32 v{44+k}, v16, v{24+k}")
        for wi in range(1, 4):
            a(f"v_fmac_f32 v{44+k}, v{16+2*wi}, v{24+4*wi+k}")
    for k in range(4):
        a(f"v_min_u32 v{44+k}, s{S_C1}, v{44+k}")
    a(f"v_min_u32 v40, s{S_C1}, v40\nv_min_u32 v41, s{S_C1}, v41")
    a("v_lshlrev_b32 v15, 13, v4\nv_lshl_add_u32 v15, v3, 4, v15")
    a(f"s_lshl_b32 s{S_C2}, s{S_KVH}, 15\ns_lshl_b32 s{S_TMP}, s{S_SPL}, 9\ns_add_u32 s{S_C2}, s{S_C2}, s{S_TMP}\ns_lshl_b32 s{S_TMP}, s{S_B1}, 8\ns_add_u32 s{S_C2}, s{S_C2}, s{S_TMP}\ns_add_u32 s{S_C2}, s{S_C2}, {OP}")
    a(f"buffer_store_dwordx4 v[44:47], v15, {S(SWS)}, s{S_C2} offen sc1")
    a("v_lshlrev_b32 v15, 8, v14")
    a(f"s_lshl_b32 s{S_C2}, s{S_KVH}, 9\ns_lshl_b32 s{S_TMP}, s{S_SPL}, 4\ns_add_u32 s{S_C2}, s{S_C2}, s{S_TMP}\ns_lshl_b32 s{S_TMP}, s{S_B1}, 3\ns_add_u32 s{S_C2}, s{S_C2}, s{S_TMP}\ns_add_u32 s{S_C2}, s{S_C2}, {ST}")
    a("s_mov_b32 exec_lo, 1\ns_mov_b32 exec_hi, 1")
    a(f"buffer_store_dwordx2 v[40:41], v15, {S(SWS)}, s{S_C2} offen sc1")
    a("s_mov_b64 exec, -1")
    lds_inc(a, F_PUB, 1, 2)
    stamp(a, 8)
    a.lab("L_att_done")
    la = a.new()
    a(f"s_cmp_eq_u32 s{S_ROLE}, 2\ns_cbranch_scc0 {la}")
    if MULTI:
        a(f"s_and_b32 s{S_WAVE}, s{S_B0}, 3\ns_branch L_red")
    else:
        a("s_endpgm")
    a.lab(la)
    la = a.new()
    a(f"s_cmp_eq_u32 s{S_B0}, 1\ns_cbranch_scc0 {la}")
    a(f"s_mov_b32 s{S_WAVE}, 4")
    a(f"s_cmp_eq_u32 s{S_ROLE}, 0\ns_cbranch_scc1 L_ffn")
    a(f"s_cmp_eq_u32 s{S_ROLE}, 1\ns_cbranch_scc1 L_wo")
    a.lab(la)
    a(f"s_lshr_b32 s{S_TMP}, {0b00110101 if MULTI else 0b00000001}, s{S_B0}\ns_and_b32 s{S_TMP}, s{S_TMP}, 1\ns_cbranch_scc0 L_end")
    a(f"s_cmp_eq_u32 s{S_ROLE}, 0\ns_cbranch_scc1 L_h")
    a(f"s_cmp_eq_u32 s{S_ROLE}, 1\ns_cbranch_scc0 L_end")
    g = a.new("G"); gd = a.new("GD")
    a(f"s_lshr_b32 s{S_B2}, s{S_RIDX}, 2\ns_lshl_b32 s{S_B2}, s{S_B2}, 4\ns_mov_b32 s{S_CNT}, 0")
    a.lab(g)
    a(f"buffer_load_dword v16, v1, {S(SDBG)}, s{S_B2} offen sc1")
    a("s_waitcnt vmcnt(0)")
    a(f"v_readfirstlane_b32 s{S_TMP}, v16")
    a(f"s_cmp_ge_u32 s{S_TMP}, 16\ns_cbranch_scc1 {gd}")
    a(f"s_add_u32 s{S_CNT}, s{S_CNT}, 1\ns_cmp_gt_u32 s{S_CNT}, {SPIN_LIMIT}\ns_cbranch_scc1 {gd}")
    a(f"s_sleep 8\ns_branch {g}")
    a.lab(gd)
    a(f"s_lshr_b32 s{S_TMP}, s{S_RIDX}, 1\ns_lshl_b32 s{S_B2}, s{S_TMP}, 8\ns_add_u32 s{S_B2}, s{S_B2}, {ST}")
    a(f"s_lshl_b32 s{S_C2}, s{S_RIDX}, 13\ns_add_u32 s{S_C2}, s{S_C2}, {OP}")
    a("v_and_b32 v13, 31, v0\nv_lshlrev_b32 v13, 3, v13")
    a("v_lshlrev_b32 v14, 3, v4")
    a("v_lshlrev_b32 v15, 4, v0")
    if OPRE:
        pl = a.new("Q"); pd = a.new("QD")
        a(f"s_add_u32 s{S_FP}, s{P_WS}, s{S_B2}\ns_addc_u32 s{S_FP+1}, s{P_WS+1}, 0\ns_mov_b32 s{S_CNT}, 0")
        a.lab(pl)
        for hf in range(4):
            a(f"s_load_dwordx16 s[36:51], s[{S_FP}:{S_FP+1}], {64*hf} glc")
            a("s_waitcnt lgkmcnt(0)")
            for k in range(1, 16): a(f"s_max_u32 s36, s36, s{36+k}")
            a(f"s_cmp_eq_u32 s36, -1\ns_cbranch_scc1 {pl}_r")
        a(f"s_branch {pd}")
        a.lab(pl + "_r")
        a(f"s_add_u32 s{S_CNT}, s{S_CNT}, 1\ns_cmp_gt_u32 s{S_CNT}, 200\ns_cbranch_scc1 {pd}")
        a(f"s_sleep 1\ns_branch {pl}")
        a.lab(pd)
    elif OPRE0:
        def ld0():
            a(f"buffer_load_dwordx2 v[16:17], v13, {S(SWS)}, s{S_B2} offen sc1")
        poll_loop(a, ld0, [16, 17], 12, sleep=2)
    def ld1():
        for t in range(8):
            a(f"buffer_load_dwordx2 {vr(16+2*t,2)}, v14, {S(SWS)}, s{S_B2} offen offset:{32*t} sc1")
        for t in range(8):
            if t % 4 == 0: a(f"s_add_u32 s{S_TMP}, s{S_C2}, {t*1024}")
            a(f"buffer_load_dwordx4 {vr(32+4*t,4)}, v15, {S(SWS)}, s{S_TMP} offen offset:{(t%4)*1024} sc1")
    poll_loop(a, ld1, range(16, 64), 12, sleep=GSLEEP)
    a("v_max3_f32 v12, v16, v18, v20\nv_max3_f32 v12, v12, v22, v24\nv_max3_f32 v12, v12, v26, v28\nv_max_f32 v12, v12, v30")
    a("v_mov_b32 v13, v12")
    a.nop(2)
    a("v_permlane32_swap_b32 v12, v13")
    a.nop(1)
    a("v_max_f32 v12, v12, v13")
    for t in range(8): a(f"v_sub_f32 v{16+2*t}, v{16+2*t}, v12")
    for t in range(8): a(f"v_exp_f32 v{16+2*t}, v{16+2*t}")
    a.nop(1)
    a("v_mul_f32 v64, v16, v17")
    for t in range(1, 8): a(f"v_fmac_f32 v64, v{16+2*t}, v{17+2*t}")
    for k in range(4):
        a(f"v_mul_f32 v{65+k}, v16, v{32+k}")
        for t in range(1, 8): a(f"v_fmac_f32 v{65+k}, v{16+2*t}, v{32+4*t+k}")
    for k in range(5): a(f"v_mov_b32 v{70+k}, v{64+k}")
    a.nop(2)
    for k in range(5): a(f"v_permlane32_swap_b32 v{64+k}, v{70+k}")
    a.nop(1)
    for k in range(5): a(f"v_add_f32 v{64+k}, v{64+k}, v{70+k}")
    a("v_rcp_f32 v64, v64\ns_nop 0")
    for k in range(4): a(f"v_mul_f32 v{65+k}, v64, v{65+k}")
    a("v_cvt_pk_bf16_f32 v66, v65, v66\nv_cvt_pk_bf16_f32 v67, v67, v68")
    a("v_and_b32 v13, 31, v0\nv_lshlrev_b32 v13, 3, v13")
    a(f"ds_write_b64 v13, v[66:67] offset:{OL}")
    a("s_waitcnt lgkmcnt(0)")
    lds_inc(a, F_O, 1, 2)
    stamp(a, 9)
    a.lab("L_end")
    a("s_endpgm")
    out += a.L
    out.append(f""".section .rodata,"a"
.p2align 6
.amdhsa_kernel {KN}
  .amdhsa_next_free_vgpr 168
  .amdhsa_next_free_sgpr 102
  .amdhsa_accum_offset 168
  .amdhsa_group_segment_fixed_size 0
  .amdhsa_kernarg_size 104
  .amdhsa_user_sgpr_count 2
  .amdhsa_user_sgpr_kernarg_segment_ptr 1
  .amdhsa_system_sgpr_workgroup_id_x 1
.end_amdhsa_kernel""")
    return "\n".join(out) + "\n"

if __name__ == "__main__":
    if len(sys.argv) > 2 and sys.argv[2] == "stamps": STAMPS = True
    for kv in sys.argv[3:]:
        k, v = kv.split("="); globals()[k] = int(v)
    if len(sys.argv) > 2 and sys.argv[2] == "diag": DIAG = True
    if len(sys.argv) > 2 and sys.argv[2] == "diag2": DIAG2 = True
    open(sys.argv[1], "w").write(gen())
```
